```python
import torch

def _softmax(x, axis=-1):
    return torch.softmax(x, dim=axis)
def _gelu(x):
    return torch.nn.functional.gelu(x, approximate="tanh")
def _silu(x):
    return torch.nn.functional.silu(x)
def _sigmoid(x):
    return torch.sigmoid(x)
def _layernorm(x, axis=-1, eps=1e-5):
    m = x.mean(dim=axis, keepdim=True)
    v = x.var(dim=axis, keepdim=True, unbiased=False)
    return (x - m) / torch.sqrt(v + eps)
def _scatter_add(tgt, idx, src, axis=0):
    return tgt.clone().index_add_(axis, idx, src)
def _segment_sum(src, seg, n):
    out = torch.zeros((n,) + src.shape[1:], dtype=src.dtype)
    return out.index_add_(0, seg, src)
def _pad(x, pw):
    flat = tuple(v for pair in reversed(pw) for v in pair)
    return torch.nn.functional.pad(x, flat)

kernel_name = 'parallel_sum__compressed_kv_cla__moe_arch_mod__prompt'

def setup_inputs():

    _w = (lambda a: (lambda t: t.to(torch.bfloat16) if t.is_floating_point() else t)(torch.as_tensor(a)))
    def _A_setup():
        B, H, Sq, Sk, D, M = 1, 32, 2048, 2048, 128, 576
        Dc = 4 * D
        return {
            "x": _w((lambda *s: torch.randn(*s, dtype=torch.bfloat16) * 0.05)(B, Sq, M)),
            "c_kv": _w((lambda *s: torch.randn(*s, dtype=torch.bfloat16) * 1.6)(B, Sk, Dc)),
            "w_q": _w((lambda *s: torch.randn(*s, dtype=torch.bfloat16) * 0.8)(M, H, D) * (M ** -0.5)),
            "w_uk": _w((lambda *s: torch.randn(*s, dtype=torch.bfloat16) * 0.8)(Dc, H, D) * (Dc ** -0.5)),
            "w_uv": _w((lambda *s: torch.randn(*s, dtype=torch.bfloat16) * 1.6)(Dc, H, D) * (Dc ** -0.5)),
            "w_o": _w((lambda *s: torch.randn(*s, dtype=torch.bfloat16) * 1.6)(H, D, M) * ((H * D) ** -0.5)),
        }
    _A_in = _A_setup()

    def _B_setup():
        B, S, D, F, C = 1, 2048, 576, 4608, 8
        return {
            "x": _w((lambda *s: torch.randn(*s, dtype=torch.bfloat16) * 0.05)(B, S, D)),
            "w_r": _w((lambda *s: torch.randn(*s, dtype=torch.bfloat16) * 0.05)(D)),
            "w_gate": _w((lambda *s: torch.randn(*s, dtype=torch.bfloat16) * 0.05)(D, F)),
            "w_up": _w((lambda *s: torch.randn(*s, dtype=torch.bfloat16) * 0.05)(D, F)),
            "w_down": _w((lambda *s: torch.randn(*s, dtype=torch.bfloat16) * 0.05)(F, D)),
        }
    _B_in = _B_setup()

    return {
        "A_x": _A_in["x"],
        "A_c_kv": _A_in["c_kv"],
        "A_w_q": _A_in["w_q"],
        "A_w_uk": _A_in["w_uk"],
        "A_w_uv": _A_in["w_uv"],
        "A_w_o": _A_in["w_o"],
        "B_x": _B_in["x"],
        "B_w_r": _B_in["w_r"],
        "B_w_gate": _B_in["w_gate"],
        "B_w_up": _B_in["w_up"],
        "B_w_down": _B_in["w_down"],
    }

def reference(A_x, A_c_kv, A_w_q, A_w_uk, A_w_uv, A_w_o, B_x, B_w_r, B_w_gate, B_w_up, B_w_down):
    def _A_ref(x, c_kv, w_q, w_uk, w_uv, w_o):
        B, Sq, M = x.shape[0], x.shape[1], x.shape[2]
        Sk = c_kv.shape[1]
        H, D = w_q.shape[1], w_q.shape[2]
        q = torch.einsum("bqm,mhd->bhqd", x, w_q)
        k = torch.einsum("bkc,chd->bhkd", c_kv, w_uk)
        v = torch.einsum("bkc,chd->bhkd", c_kv, w_uv)
        scores = torch.einsum("bhqd,bhkd->bhqk", q, k) * (D ** -0.5)
        off = Sk - Sq
        qi = torch.arange(Sq)[:, None]
        kj = torch.arange(Sk)[None, :]
        cmask = kj <= (qi + off)
        scores = torch.where(cmask[None, None], scores, -1e9)
        p = _softmax(scores, axis=-1)
        ctx = torch.einsum("bhqk,bhkd->bhqd", p, v)
        return torch.einsum("bhqd,hdm->bqm", ctx, w_o)

    def _B_ref(x, w_r, w_gate, w_up, w_down):
        B, S, D = x.shape
        C = 8
        r = x @ w_r
        idx = torch.argsort(-r, axis=-1)[:, :C]
        idx_e = (lambda x, n, axis: torch.repeat_interleave(x, n, dim=axis))(idx.reshape(B, C, 1), D, axis=2)
        x_sel = (lambda x, i, axis: torch.take_along_dim(x, i, dim=axis))(x, idx_e, axis=1)
        g = _silu(x_sel @ w_gate)
        u = x_sel @ w_up
        y = (g * u) @ w_down
        r_sel = _sigmoid((lambda x, i, axis: torch.take_along_dim(x, i, dim=axis))(r, idx, axis=1))
        y = y * r_sel.reshape(B, C, 1)
        b_off = (torch.arange(B) * S).reshape(B, 1)
        flat_idx = (idx + b_off).reshape(B * C)
        zero = (x * 0.0).reshape(B * S, D)
        upd = _scatter_add(zero, flat_idx, y.reshape(B * C, D), axis=0)
        return x + upd.reshape(B, S, D)

    x = A_x
    xn = _layernorm(x, axis=-1)
    return x + _A_ref(xn, A_c_kv, A_w_q, A_w_uk, A_w_uv, A_w_o) + _B_ref(xn, B_w_r, B_w_gate, B_w_up, B_w_down)
```

```python
class Asm:
    def __init__(self):
        self.lines = []
        self.uid = 0
    def __call__(self, s):
        for ln in s.strip('\n').split('\n'):
            ln = ln.strip()
            self.lines.append(ln if ln.endswith(':') else '    ' + ln)
    def label(self, name):
        self.lines.append(name + ':')
    def raw(self, s):
        self.lines.append(s)
    def newlabel(self, base):
        self.uid += 1
        return f"L_{base}_{self.uid}"
    def text(self):
        return '\n'.join(self.lines) + '\n'

def v(i, n=1):
    return f"v{i}" if n == 1 else f"v[{i}:{i+n-1}]"
def a(i, n=1):
    return f"a{i}" if n == 1 else f"a[{i}:{i+n-1}]"
def s(i, n=1):
    return f"s{i}" if n == 1 else f"s[{i}:{i+n-1}]"

def kernel_begin(A, name):
    A.raw(f".globl {name}\n.p2align 8\n.type {name},@function\n{name}:")

def kernel_desc(name, vgpr, sgpr=102, accum=None, extra=()):
    if accum is None:
        accum = min(256, (vgpr + 3) // 4 * 4)
    t = f""".p2align 6
.amdhsa_kernel {name}
  .amdhsa_next_free_vgpr {vgpr}
  .amdhsa_next_free_sgpr {sgpr}
  .amdhsa_accum_offset {accum}
  .amdhsa_group_segment_fixed_size 0
  .amdhsa_kernarg_size 112
  .amdhsa_user_sgpr_count 2
  .amdhsa_user_sgpr_kernarg_segment_ptr 1
  .amdhsa_system_sgpr_workgroup_id_x 1
"""
    for e in extra:
        t += "  " + e + "\n"
    t += ".end_amdhsa_kernel\n"
    return t

def srd(A, d, ptr_lo, nbytes):
    A(f"s_mov_b32 s{d}, s{ptr_lo}")
    A(f"s_mov_b32 s{d+1}, s{ptr_lo+1}")
    A(f"s_mov_b32 s{d+2}, {hex(nbytes)}")
    A(f"s_mov_b32 s{d+3}, 0x00020000")
```

```python
import re, sys

REG = re.compile(r'\b([vas])(\d+)\b|\b([vas])\[(\d+):(\d+)\]|\b(vcc|exec|m0|scc)\b')
def regs(tok):
    out = set()
    for m in REG.finditer(tok):
        if m.group(1): out.add((m.group(1), int(m.group(2))))
        elif m.group(3):
            for i in range(int(m.group(4)), int(m.group(5)) + 1): out.add((m.group(3), i))
        else: out.add((m.group(6), 0))
    return out

TRANS = ('v_exp_f32', 'v_log_f32', 'v_rcp_f32', 'v_rsq_f32', 'v_sqrt_f32', 'v_sin_f32', 'v_cos_f32')

class I:
    __slots__ = ('text', 'op', 'kind', 'w', 'r', 'srcc', 'ab', 'ws', 'line', 'passes', 'dpp', 'sconst')
    def __init__(self, text, line):
        self.text = text; self.line = line
        t = text.split(';')[0].strip()
        parts = t.split(None, 1)
        self.op = parts[0]
        args = [x.strip() for x in parts[1].split(',')] if len(parts) > 1 else []
        op = self.op
        self.w = set(); self.r = set(); self.srcc = set(); self.ab = set(); self.ws = 1; self.passes = 0
        self.dpp = ('quad_perm' in t or 'row_' in t or 'dpp' in op)
        self.sconst = set()
        if op == 's_nop':
            self.kind = 'nop'; self.ws = int(args[0], 0) + 1
        elif op.startswith('v_mfma'):
            self.kind = 'mfma'
            self.w = regs(args[0]); self.ab = regs(args[1]) | regs(args[2]); self.srcc = regs(args[3])
            self.r = self.ab | self.srcc
            self.passes = 8 if '32x32' in op else 4
        elif op.startswith('v_cmp'):
            self.kind = 'valu'; self.w = regs(args[0]); self.r = set().union(*[regs(x) for x in args[1:]])
            if op.startswith('v_cmpx'): self.w.add(('exec', 0))
        elif op.startswith('v_permlane') and 'swap' in op:
            self.kind = 'valu'; self.w = regs(args[0]) | regs(args[1]); self.r = set(self.w)
        elif op.startswith('v_readfirstlane') or op.startswith('v_readlane'):
            self.kind = 'valu'; self.w = regs(args[0]); self.r = set().union(*[regs(x) for x in args[1:]])
        elif op.startswith('v_'):
            self.kind = 'valu'
            self.w = regs(args[0]); rest = args[1:]
            if op.startswith(('v_add_co', 'v_addc_co', 'v_sub_co', 'v_subb_co', 'v_div_scale')):
                self.w |= regs(args[1]); rest = args[2:]
            self.r = set().union(*[regs(x) for x in rest]) if rest else set()
            if op.startswith(('v_fmac', 'v_dot2c', 'v_writelane')): self.r |= self.w
            if op.startswith('v_cndmask') and len(args) == 3: self.r.add(('vcc', 0))
        elif op.startswith('ds_'):
            self.kind = 'ds'
            if op.startswith(('ds_read', 'ds_bpermute', 'ds_permute', 'ds_swizzle')) or '_rtn' in op:
                self.w = regs(args[0]); self.r = set().union(*[regs(x) for x in args[1:]])
            else:
                self.r = set().union(*[regs(x) for x in args])
        elif op.startswith(('buffer_', 'global_', 'flat_')):
            self.kind = 'vmem'
            allr = set().union(*[regs(x) for x in args]) if args else set()
            if 'load' in op and not t.endswith(' lds') and ' lds' not in t:
                self.w = regs(args[0]); self.r = set().union(*[regs(x) for x in args[1:]])
            elif 'atomic' in op and ' sc0' in t:
                self.w = regs(args[0]); self.r = allr
            else:
                self.r = allr
            if ' lds' in t: self.r.add(('m0', 0))
        elif op.startswith('s_'):
            self.kind = 'salu'
            if op.startswith(('s_cmp', 's_cbranch', 's_branch', 's_waitcnt', 's_barrier', 's_endpgm', 's_setprio', 's_sleep', 's_setpc')):
                self.r = set().union(*[regs(x) for x in args]) if args else set()
            else:
                self.w = regs(args[0]); self.r = set().union(*[regs(x) for x in args[1:]]) if len(args) > 1 else set()
                if 'saveexec' in op: self.w.add(('exec', 0))
        else:
            self.kind = 'other'

def vg(rs): return {x for x in rs if x[0] in 'va'}
def sg(rs): return {x for x in rs if x[0] == 's' or x[0] == 'vcc'}

def need(p, c):
    n = 0; why = ''
    def up(k, w):
        nonlocal n, why
        if k > n: n = k; why = w
    if p.kind == 'valu':
        pw = vg(p.w); ps = sg(p.w)
        if c.kind == 'mfma' and pw & c.r: up(2, 'valu->mfma')
        if c.kind == 'valu':
            if p.op in TRANS and c.op not in TRANS and pw & c.r: up(1, 'trans->valu')
            if p.op in TRANS and c.op in TRANS and pw & c.r: up(1, 'trans->trans(safe)')
            if c.op.startswith('v_permlane') and pw & c.r: up(2, 'valu->permlane')
            if c.op.startswith(('v_readfirstlane', 'v_readlane')) and pw & c.r: up(1, 'valu->readlane')
            if c.dpp and pw & c.r: up(2, 'valu->dpp')
            if ps & c.r:
                up(4 if c.op.startswith(('v_readlane', 'v_writelane')) else 2, 'valu sgpr->valu')
            if ('exec', 0) in p.w: up(5 if c.dpp else 0, 'exec->dpp')
        if c.kind == 'vmem' and ps & c.r: up(5, 'valu sgpr->vmem')
        if c.kind == 'mfma' and ('exec', 0) in p.w: up(4, 'valu exec->mfma')
        if c.kind in ('vmem', 'ds') and p.op in TRANS and pw & c.r: up(1, 'trans->mem(safe)')
    if p.kind == 'salu':
        if ('m0', 0) in p.w and c.kind == 'vmem' and ('m0', 0) in c.r: up(1, 'm0->dma')
    if p.kind == 'mfma':
        big = {8: 12, 4: 8}[p.passes]
        if c.kind == 'mfma':
            if p.w & c.ab: up(big, 'mfma D->A/B')
            if p.w & c.srcc and not (p.w == c.srcc and p.passes == c.passes): up(big - 2, 'mfma D->C overlap')
            if p.w & c.w and not (p.w == c.srcc): up(big - 2, 'mfma WAW(safe)')
        elif c.kind in ('valu', 'ds', 'vmem'):
            if p.w & (c.r | c.w): up(big, 'mfma D->' + c.kind)
            if c.kind == 'valu' and p.srcc & c.w: up({8: 7, 4: 3}[p.passes], 'mfma C WAR')
            if c.kind in ('ds', 'vmem') and p.srcc & c.w: up({8: 7, 4: 3}[p.passes], 'mfma C WAR mem(safe)')
    if p.kind == 'vmem' and ('store' in p.op or 'atomic' in p.op) and ('x4' in p.op or 'x3' in p.op):
        data = vg(regs(p.text.split(',')[0])) if p.op.startswith('buffer') else vg(regs(p.text.split(',')[1]))
        if c.kind == 'valu' and data & c.w: up(2, 'store data WAR')
        elif data & c.w: up(1, 'store data WAR')
    if p.kind == 'ds' and p.op.startswith('ds_write') and ('b128' in p.op or 'b96' in p.op):
        pass
    return n, why

def check_seq(seq, report, start_idx=0):
    bad = 0
    for j in range(start_idx, len(seq)):
        c = seq[j]
        d = 0
        for i in range(j - 1, max(-1, j - 24), -1):
            p = seq[i]
            n, why = need(p, c)
            if n > d:
                report(p, c, n, d, why); bad += 1
            d += p.ws
            if d >= 20: break
    return bad

def check_text(text, verbose=True):
    ins = []; labels = {}
    for ln, raw in enumerate(text.split('\n'), 1):
        t = raw.split(';')[0].strip()
        if not t or t.startswith('.'): continue
        if t.endswith(':'):
            labels[t[:-1]] = len(ins); continue
        ins.append(I(t, ln))
    seen = set()
    def report(p, c, n, d, why):
        k = (p.line, c.line)
        if k in seen: return
        seen.add(k)
        if verbose: print(f"HAZARD {why}: need {n} have {d}\n   L{p.line}: {p.text}\n   L{c.line}: {c.text}")
    segs = []; cur = []
    for x in ins:
        cur.append(x)
        if x.op in ('s_branch', 's_endpgm', 's_setpc_b64'):
            segs.append(cur); cur = []
    segs.append(cur)
    bad = sum(check_seq(s_, report) for s_ in segs)
    for k, x in enumerate(ins):
        if x.op.startswith(('s_branch', 's_cbranch', 's_call')):
            tgt = x.text.replace(',', ' ').split()[-1]
            if tgt in labels:
                pre = ins[max(0, k - 24):k + 1]
                post = []
                for y in ins[labels[tgt]:labels[tgt] + 24]:
                    post.append(y)
                    if y.op in ('s_branch', 's_endpgm', 's_setpc_b64'): break
                bad += check_seq(pre + post, report, len(pre))
    return len(seen)

if __name__ == '__main__':
    n = check_text(open(sys.argv[1]).read())
    print("hazards:", n)

def fix_text(text):
    out = []; hist = []; added = 0
    for ln, raw in enumerate(text.split('\n'), 1):
        t = raw.split(';')[0].strip()
        if not t or t.startswith('.') or t.endswith(':'):
            out.append(raw); continue
        c = I(t, ln)
        d = 0; short = 0
        for p in reversed(hist[-24:]):
            n, why = need(p, c)
            if n - d > short: short = n - d
            d += p.ws
            if d >= 20: break
        while short > 0:
            k = min(short, 16)
            nop = I(f"s_nop {k-1}", ln); hist.append(nop); out.append(f"    s_nop {k-1}"); short -= k; added += 1
        hist.append(c); out.append(raw)
        if c.op in ('s_branch', 's_endpgm', 's_setpc_b64'): hist = []
    return '\n'.join(out), added
```

```python
import sys, math, struct
import hazard
from asmlib import *

NAME = "parallel_sum__compressed_kv_cla__moe_arch_mod__prompt"
KA_X, KA_C, KA_WQ, KA_WUK, KA_WUV, KA_WO, KA_BX, KA_WR, KA_WG, KA_WU, KA_WD, KA_OUT, KA_DBG, KA_WS = [8 * i for i in range(14)]
WS_XNF = 0x0
WS_XNR = 0x240000
WS_R   = 0x480000
WS_SEL = 0x482000
WS_Y   = 0x483000
WS_KV  = 0x1000000
WS_CTX = 0x3000000
WS_BYTES = 0x10000000
OOB = 0x40000000

def f32bits(x):
    return struct.unpack('<I', struct.pack('<f', x))[0]

MFMA = "v_mfma_f32_32x32x16_bf16"

class VM:
    def __init__(self, A): self.A = A; self.ops = []
    def issue(self, text, tag=None):
        self.A(text); self.ops.append(tag)
    def wait(self, tag):
        idx = max(i for i, t in enumerate(self.ops) if t == tag)
        n = len(self.ops) - 1 - idx
        self.A(f"s_waitcnt vmcnt({min(n, 63)})")


STAMP = False
class Stamps:
    def __init__(self, A, base=60): self.A = A; self.base = base; self.n = 0
    def mark(self):
        if not STAMP: return
        self.A(f"s_memtime s[{self.base+2*self.n}:{self.base+2*self.n+1}]"); self.n += 1
    def at(self, i):
        if not STAMP: return
        self.A(f"s_memtime s[{self.base+2*i}:{self.base+2*i+1}]"); self.n = max(self.n, i + 1)
    def dump(self, srd_ws, sWave, vtmp, stmp, region, nw):
        if not STAMP: return
        A = self.A
        A(f"s_memrealtime s[{self.base+2*self.n}:{self.base+2*self.n+1}]")
        A("s_waitcnt lgkmcnt(0)")
        A(f"s_mul_i32 s{stmp}, s2, {nw}\ns_add_u32 s{stmp}, s{stmp}, s{sWave}\ns_lshl_b32 s{stmp}, s{stmp}, 7\ns_add_u32 s{stmp}, s{stmp}, {hex(region)}")
        A(f"v_mov_b32 {v(vtmp+1)}, 0")
        for i in range(self.n + 1):
            A(f"v_mov_b32 {v(vtmp)}, s{self.base+2*i}")
            A(f"buffer_store_dword {v(vtmp)}, {v(vtmp+1)}, s[{srd_ws}:{srd_ws+3}], s{stmp} offen offset:{4*i}")
            A("s_nop 1")

def dpp_sum32(A, x, t):
    for ctl in ("quad_perm:[1,0,3,2]", "quad_perm:[2,3,0,1]", "row_half_mirror", "row_mirror"):
        A("s_nop 1")
        A(f"v_add_f32_dpp {v(x)}, {v(x)}, {v(x)} {ctl} row_mask:0xf bank_mask:0xf")
    A(f"v_mov_b32 {v(t)}, {v(x)}")
    A("s_nop 1")
    A(f"v_permlane16_swap_b32 {v(x)}, {v(t)}")
    A("s_nop 0")
    A(f"v_add_f32 {v(x)}, {v(x)}, {v(t)}")

def gen_k1():
    A = Asm(); name = "kvproj_kernel"
    kernel_begin(A, name)
    ACC = 0; FR = [128, 152]
    VCR = 176
    VWR = 180
    VDC = 184
    VDW = 188
    VLANE = 192; VT = 193
    S_C = 8; S_W = 12; S_X = 16; S_WS = 20; S_WR = 24
    sW = 28; sH = 29; sTT = 30; sSC = 31; sSW = 32; sMC = 33; sMW = 34; sCnt = 35; sT = 36
    A(f"s_cmp_ge_u32 s2, 256\ns_cbranch_scc1 L_k1_done")
    ST = Stamps(A)
    ST.mark()
    if STAMP: A("s_memrealtime s[58:59]")
    A(f"s_load_dwordx2 s[40:41], s[0:1], {KA_X}")
    A(f"s_load_dwordx2 s[42:43], s[0:1], {KA_C}")
    A(f"s_load_dwordx4 s[44:47], s[0:1], {KA_WUK}")
    A(f"s_load_dwordx2 s[48:49], s[0:1], {KA_WR}")
    A(f"s_load_dwordx2 s[50:51], s[0:1], {KA_WS}")
    A(f"v_and_b32 {v(VLANE)}, 63, v0")
    A(f"v_lshrrev_b32 {v(VT)}, 6, v0\ns_nop 0\nv_readfirstlane_b32 s{sW}, {v(VT)}")
    A(f"s_and_b32 s{sH}, s2, 7\ns_lshl_b32 s{sH}, s{sH}, 2\ns_lshr_b32 s{sT}, s2, 3\ns_and_b32 s{sT}, s{sT}, 3\ns_add_u32 s{sH}, s{sH}, s{sT}")
    A(f"s_lshr_b32 s{sTT}, s2, 5")
    L = VLANE; T = VT
    A(f"v_lshrrev_b32 {v(T)}, 3, {v(L)}")
    A(f"s_lshl_b32 s{sT}, s{sW}, 5")
    A(f"v_add_u32 {v(T)}, s{sT}, {v(T)}\nv_lshlrev_b32 {v(T)}, 10, {v(T)}")
    A(f"v_lshrrev_b32 {v(T+1)}, 4, {v(L)}\nv_and_b32 {v(T+2)}, 7, {v(L)}\nv_xor_b32 {v(T+1)}, {v(T+1)}, {v(T+2)}")
    for j in range(4):
        A(f"v_xor_b32 {v(T+2)}, {4*(j&1)}, {v(T+1)}\nv_lshlrev_b32 {v(T+2)}, 4, {v(T+2)}")
        A(f"v_add_u32 {v(T+2)}, {v(T)}, {v(T+2)}\nv_add_u32 {v(VDC+j)}, {j*8192 - j*1024}, {v(T+2)}")
    A(f"s_and_b32 s{sT}, s{sW}, 3\ns_lshl_b32 s{sT}, s{sT}, 4")
    A(f"v_lshrrev_b32 {v(T)}, 4, {v(L)}\nv_lshlrev_b32 {v(T+1)}, 2, {v(T)}\nv_and_b32 {v(T+2)}, 15, {v(L)}\nv_xor_b32 {v(T+1)}, {v(T+1)}, {v(T+2)}\nv_lshlrev_b32 {v(T+1)}, 4, {v(T+1)}")
    A(f"v_add_u32 {v(T)}, s{sT}, {v(T)}\nv_lshlrev_b32 {v(T)}, 13, {v(T)}\nv_add_u32 {v(T)}, {v(T)}, {v(T+1)}")
    for j in range(4):
        A(f"v_add_u32 {v(VDW+j)}, {j*32768 - j*1024}, {v(T)}")
    A(f"v_lshrrev_b32 {v(T)}, 5, {v(L)}\nv_lshrrev_b32 {v(T+1)}, 1, {v(L)}\nv_and_b32 {v(T+1)}, 7, {v(T+1)}\nv_xor_b32 {v(T)}, {v(T)}, {v(T+1)}")
    A(f"v_and_b32 {v(T+1)}, 31, {v(L)}\nv_lshlrev_b32 {v(T+1)}, 7, {v(T+1)}")
    A(f"s_and_b32 s{sT}, s{sW}, 1\ns_lshl_b32 s{sT}, s{sT}, 14\nv_add_u32 {v(T+1)}, s{sT}, {v(T+1)}")
    for ks in range(4):
        A(f"v_xor_b32 {v(T+2)}, {2*ks}, {v(T)}\nv_lshlrev_b32 {v(T+2)}, 4, {v(T+2)}\nv_add_u32 {v(VCR+ks)}, {v(T+1)}, {v(T+2)}")
    A(f"v_lshrrev_b32 {v(T)}, 5, {v(L)}\nv_lshlrev_b32 {v(T)}, 3, {v(T)}")
    A(f"v_bfe_u32 {v(T+1)}, {v(L)}, 2, 2")
    A(f"v_add_u32 {v(T)}, {v(T)}, {v(T+1)}\nv_lshlrev_b32 {v(T)}, 8, {v(T)}")
    A(f"v_bfe_u32 {v(T+2)}, {v(L)}, 4, 1\nv_lshlrev_b32 {v(T+2)}, 5, {v(T+2)}\nv_add_u32 {v(T)}, {v(T)}, {v(T+2)}")
    A(f"v_and_b32 {v(T+2)}, 3, {v(L)}\nv_lshlrev_b32 {v(T+2)}, 3, {v(T+2)}\nv_add_u32 {v(T)}, {v(T)}, {v(T+2)}")
    A(f"s_lshr_b32 s{sT}, s{sW}, 2\ns_lshl_b32 s{sT}, s{sT}, 14\ns_add_u32 s{sT}, s{sT}, 32768\nv_add_u32 {v(T)}, s{sT}, {v(T)}")
    A(f"s_and_b32 s{sT}, s{sW}, 2")
    for nbl in range(2):
        A(f"v_xor_b32 {v(T+2)}, s{sT}, {v(T+1)}\nv_xor_b32 {v(T+2)}, {nbl}, {v(T+2)}\nv_lshlrev_b32 {v(T+2)}, 6, {v(T+2)}\nv_add_u32 {v(VWR+nbl)}, {v(T)}, {v(T+2)}")
    A("s_waitcnt lgkmcnt(0)")
    srd(A, S_C, 42, 2048 * 512 * 2)
    A(f"s_cmp_lt_u32 s{sW}, 4\ns_cselect_b32 s{S_W}, s44, s46\ns_cselect_b32 s{S_W+1}, s45, s47")
    A(f"s_mov_b32 s{S_W+2}, {hex(512*4096*2)}\ns_mov_b32 s{S_W+3}, 0x00020000")
    srd(A, S_X, 40, 2048 * 576 * 2)
    srd(A, S_WS, 50, WS_BYTES)
    srd(A, S_WR, 48, 576 * 2)
    A(f"s_lshl_b32 s{sSC}, s{sTT}, 18")
    A(f"s_lshl_b32 s{sSW}, s{sH}, 8")
    A(f"s_lshl_b32 s{sMC}, s{sW}, 12")
    A(f"s_add_u32 s{sMW}, s{sMC}, 32768")
    vm = VM(A)
    X = 0
    WR = 10
    VXO = 20
    A(f"v_lshrrev_b32 {v(T)}, 5, {v(L)}\ns_lshl_b32 s{sT}, s2, 3\ns_lshl_b32 s{sT+1}, s{sW}, 1\ns_add_u32 s{sT}, s{sT}, s{sT+1}")
    A(f"v_add_u32 {v(21)}, s{sT}, {v(T)}")
    A(f"s_movk_i32 s{sT+1}, 1152\nv_mul_lo_u32 {v(VXO)}, {v(21)}, s{sT+1}")
    A(f"v_and_b32 {v(22)}, 31, {v(L)}\nv_lshlrev_b32 {v(23)}, 2, {v(22)}\nv_add_u32 {v(VXO)}, {v(VXO)}, {v(23)}")
    A(f"s_cmp_ge_u32 s{sW}, 4\ns_cbranch_scc1 L_k1_noln1")
    for i in range(9):
        A(f"buffer_load_dword {v(X+i)}, {v(VXO)}, s[{S_X}:{S_X+3}], 0 offen offset:{128*i}")
    for i in range(9):
        A(f"buffer_load_dword {v(WR+i)}, {v(23)}, s[{S_WR}:{S_WR+3}], 0 offen offset:{128*i}")
    A.label("L_k1_noln1")
    def dma_stage(emit, buf_s_mc, buf_s_mw):
        pass
    def dma_list():
        g = []
        g.append([f"s_mov_b32 m0, s{sMC}"])
        for j in range(4):
            g.append([f"buffer_load_dwordx4 {v(VDC+j)}, s[{S_C}:{S_C+3}], s{sSC} offen offset:{1024*j} lds"])
        g.append([f"s_mov_b32 m0, s{sMW}"])
        for j in range(4):
            g.append([f"buffer_load_dwordx4 {v(VDW+j)}, s[{S_W}:{S_W+3}], s{sSW} offen offset:{1024*j} lds"])
        return g
    def adv():
        return [f"s_add_u32 s{sSC}, s{sSC}, 128", f"s_add_u32 s{sSW}, s{sSW}, {64*8192}",
                f"s_xor_b32 s{sMC}, s{sMC}, 0x10000", f"s_xor_b32 s{sMW}, s{sMW}, 0x10000"]
    for st in range(2):
        for g in dma_list():
            for x in g:
                A(x)
                if x.startswith('s_mov_b32 m0'): A("s_nop 0")
        for x in adv(): A(x)
    ST.mark()
    A(f"s_cmp_ge_u32 s{sW}, 4\ns_cbranch_scc1 L_k1_noln2")
    A("s_waitcnt vmcnt(16)")
    F = 32
    for i in range(9):
        A(f"v_lshlrev_b32 {v(F+2*i)}, 16, {v(X+i)}\nv_and_b32 {v(F+2*i+1)}, 0xffff0000, {v(X+i)}")
    SUM = 24; TMP = 25; MEAN = 26; VAR = 27; RS = 28; SD = 29; RR = 30
    A(f"v_add_f32 {v(SUM)}, {v(F)}, {v(F+1)}")
    for i in range(2, 18): A(f"v_add_f32 {v(SUM)}, {v(SUM)}, {v(F+i)}")
    dpp_sum32(A, SUM, TMP)
    A(f"v_mul_f32 {v(MEAN)}, {hex(f32bits(1.0/576))}, {v(SUM)}")
    D = 52
    for i in range(18): A(f"v_sub_f32 {v(D+i)}, {v(F+i)}, {v(MEAN)}")
    A(f"v_mul_f32 {v(VAR)}, {v(D)}, {v(D)}")
    for i in range(1, 18): A(f"v_fmac_f32 {v(VAR)}, {v(D+i)}, {v(D+i)}")
    dpp_sum32(A, VAR, TMP)
    A(f"v_mul_f32 {v(VAR)}, {hex(f32bits(1.0/576))}, {v(VAR)}")
    A(f"v_cvt_pk_bf16_f32 {v(TMP)}, {v(MEAN)}, {v(VAR)}")
    A(f"v_lshlrev_b32 {v(MEAN)}, 16, {v(TMP)}\nv_and_b32 {v(VAR)}, 0xffff0000, {v(TMP)}")
    A(f"v_add_f32 {v(VAR)}, {hex(f32bits(1e-5))}, {v(VAR)}")
    A(f"v_cvt_pk_bf16_f32 {v(TMP)}, {v(VAR)}, {v(VAR)}\nv_and_b32 {v(VAR)}, 0xffff0000, {v(TMP)}")
    A(f"v_sqrt_f32 {v(SD)}, {v(VAR)}\ns_nop 0")
    A(f"v_cvt_pk_bf16_f32 {v(TMP)}, {v(SD)}, {v(SD)}\nv_and_b32 {v(SD)}, 0xffff0000, {v(TMP)}")
    A(f"v_rcp_f32 {v(RS)}, {v(SD)}")
    for i in range(18): A(f"v_sub_f32 {v(D+i)}, {v(F+i)}, {v(MEAN)}")
    for i in range(9):
        A(f"v_cvt_pk_bf16_f32 {v(X+i)}, {v(D+2*i)}, {v(D+2*i+1)}")
    for i in range(9):
        A(f"v_lshlrev_b32 {v(D+2*i)}, 16, {v(X+i)}\nv_and_b32 {v(D+2*i+1)}, 0xffff0000, {v(X+i)}")
    for i in range(18):
        A(f"v_mul_f32 {v(F+i)}, {v(D+i)}, {v(RS)}")
    for i in range(18):
        A(f"v_fma_f32 {v(D+i)}, -{v(F+i)}, {v(SD)}, {v(D+i)}")
    for i in range(18):
        A(f"v_fmac_f32 {v(F+i)}, {v(D+i)}, {v(RS)}")
    for i in range(9):
        A(f"v_cvt_pk_bf16_f32 {v(X+i)}, {v(F+2*i)}, {v(F+2*i+1)}")
    A(f"s_mov_b32 s{sT}, {hex(WS_XNR)}")
    for i in range(9):
        A(f"buffer_store_dword {v(X+i)}, {v(VXO)}, s[{S_WS}:{S_WS+3}], s{sT} offen offset:{128*i}")
    A(f"v_lshrrev_b32 {v(T)}, 5, {v(21)}\ns_mov_b32 s{sT+1}, 36864\nv_mul_lo_u32 {v(T)}, {v(T)}, s{sT+1}")
    A(f"v_and_b32 {v(T+1)}, 31, {v(21)}\nv_lshlrev_b32 {v(T+1)}, 4, {v(T+1)}\nv_add_u32 {v(T)}, {v(T)}, {v(T+1)}")
    A(f"v_lshrrev_b32 {v(T+1)}, 2, {v(22)}\nv_lshlrev_b32 {v(T+1)}, 9, {v(T+1)}\nv_add_u32 {v(T)}, {v(T)}, {v(T+1)}")
    A(f"v_and_b32 {v(T+1)}, 3, {v(22)}\nv_lshlrev_b32 {v(T+1)}, 2, {v(T+1)}\nv_add_u32 {v(T)}, {v(T)}, {v(T+1)}")
    for i in range(9):
        A(f"s_mov_b32 s{sT}, {hex(WS_XNF + 4096*i)}")
        A(f"buffer_store_dword {v(X+i)}, {v(T)}, s[{S_WS}:{S_WS+3}], s{sT} offen")
    for i in range(9):
        A(f"v_lshlrev_b32 {v(F+2*i)}, 16, {v(X+i)}\nv_and_b32 {v(F+2*i+1)}, 0xffff0000, {v(X+i)}")
        A(f"v_lshlrev_b32 {v(D+2*i)}, 16, {v(WR+i)}\nv_and_b32 {v(D+2*i+1)}, 0xffff0000, {v(WR+i)}")
    A(f"v_mul_f32 {v(RR)}, {v(F)}, {v(D)}")
    for i in range(1, 18): A(f"v_fmac_f32 {v(RR)}, {v(F+i)}, {v(D+i)}")
    dpp_sum32(A, RR, TMP)
    A(f"v_cvt_pk_bf16_f32 {v(TMP)}, {v(RR)}, {v(RR)}\nv_and_b32 {v(RR)}, 0xffff0000, {v(TMP)}")
    A(f"v_lshlrev_b32 {v(T)}, 2, {v(21)}\ns_mov_b32 s{sT}, {hex(WS_R)}")
    A(f"buffer_store_dword {v(RR)}, {v(T)}, s[{S_WS}:{S_WS+3}], s{sT} offen")
    A.label("L_k1_noln2")
    for i in range(128): A(f"v_mov_b32 {v(ACC+i)}, 0")
    ST.mark()
    A(f"s_cmp_ge_u32 s{sW}, 4\ns_cbranch_scc1 L_k1_noln3")
    A("s_waitcnt vmcnt(27)")
    A("s_branch L_k1_ln_done")
    A.label("L_k1_noln3")
    A("s_waitcnt vmcnt(8)")
    A.label("L_k1_ln_done")
    ST.mark()
    A("s_barrier")
    ST.mark()
    def reads(fs, ks):
        r = []
        for tb in range(4):
            r.append(f"ds_read_b128 {v(FR[fs]+4*tb,4)}, {v(VCR+ks)} offset:{4096*tb}")
        for nbl in range(2):
            for e in range(2):
                r.append(f"ds_read_b64_tr_b16 {v(FR[fs]+16+4*nbl+2*e,2)}, {v(VWR+nbl)} offset:{(16*ks+4*e)*256}")
        return [r[4], r[5], r[0], r[6], r[7], r[1], r[2], r[3]]
    for x in reads(0, 0): A(x)
    A(f"s_mov_b32 s{sCnt}, 0")
    A(f"s_cmp_ge_u32 s{sW}, 4\ns_cbranch_scc1 L_k1_vloop_pre")
    for kind in ("k", "v"):
        if kind == "v": A.label("L_k1_vloop_pre")
        A(".p2align 6")
        A.label(f"L_k1_loop_{kind}")
        for ks in range(4):
            fs = ks & 1
            fill = [[] for _ in range(8)]
            if ks < 3:
                rd = reads(1 - fs, ks + 1)
                A("s_waitcnt lgkmcnt(0)" if ks else "s_waitcnt lgkmcnt(0)")
            else:
                A("s_waitcnt vmcnt(0) lgkmcnt(0)")
                A("s_barrier")
                for i in range(4): A(f"v_xor_b32 {v(VCR+i)}, 0x10000, {v(VCR+i)}")
                for i in range(2): A(f"v_xor_b32 {v(VWR+i)}, 0x10000, {v(VWR+i)}")
                rd = reads(1 - fs, 0)
                A(f"s_cmp_lt_u32 s{sCnt}, 6\ns_cselect_b32 s{sSC}, s{sSC}, {hex(OOB)}\ns_cselect_b32 s{sSW}, s{sSW}, {hex(OOB)}")
                A(f"s_mov_b32 m0, s{sMC}")
                dl = dma_list()
                dm = [g[0] for g in dl if g[0].startswith('buffer')]
                for g in range(8): fill[g].append(dm[g])
                fill[3].append(f"s_mov_b32 m0, s{sMW}")
                fill[7] += adv()
                fill[6].append(f"s_add_u32 s{sCnt}, s{sCnt}, 1")
            for g in range(8): fill[g].insert(0, rd[g])
            if ks == 3: fill[7].append(f"s_cmp_lt_u32 s{sCnt}, 8")
            g = 0
            for tb in range(4):
                for nbl in range(2):
                    cf = v(FR[fs] + 4 * tb, 4); wf = v(FR[fs] + 16 + 4 * nbl, 4)
                    acc = v(ACC + (tb * 2 + nbl) * 16, 16)
                    if kind == "k": A(f"{MFMA} {acc}, {wf}, {cf}, {acc}")
                    else: A(f"{MFMA} {acc}, {cf}, {wf}, {acc}")
                    for x in fill[g]: A(x)
                    g += 1
        A(f"s_cbranch_scc1 L_k1_loop_{kind}")
        ST.at(5)
        A(f"s_lshl_b32 s{sT}, s{sH}, 20\ns_add_u32 s{sT}, s{sT}, {hex(WS_KV)}")
        A(f"s_lshl_b32 s{sT+1}, s{sTT}, 17\ns_add_u32 s{sT}, s{sT}, s{sT+1}")
        A(f"s_and_b32 s{sT+1}, s{sW}, 1\ns_lshl_b32 s{sT+1}, s{sT+1}, 16\ns_add_u32 s{sT}, s{sT}, s{sT+1}")
        A(f"s_and_b32 s{sT+1}, s{sW}, 2")
        if kind == "k": A(f"s_lshl_b32 s{sT+1}, s{sT+1}, 11")
        else: A(f"s_lshl_b32 s{sT+1}, s{sT+1}, 10\ns_add_u32 s{sT+1}, s{sT+1}, 8192")
        A(f"s_add_u32 s{sT}, s{sT}, s{sT+1}")
        A(f"v_lshlrev_b32 {v(T)}, 4, {v(L)}")
        if kind == "v": A(f"v_add_u32 {v(T+1)}, 4096, {v(T)}")
        A("s_nop 7")
        k = 0
        for tb in range(4):
            for nbl in range(2):
                for hh in range(2):
                    a0 = ACC + (tb * 2 + nbl) * 16 + 8 * hh
                    o = FR[0] + 4 * (k % 8); k += 1
                    for q in range(4):
                        A(f"v_cvt_pk_bf16_f32 {v(o+q)}, {v(a0+2*q)}, {v(a0+2*q+1)}")
                    if kind == "k":
                        A(f"buffer_store_dwordx4 {v(o,4)}, {v(T)}, s[{S_WS}:{S_WS+3}], s{sT} offen offset:{(2*nbl+hh)*1024}")
                    else:
                        A(f"buffer_store_dwordx4 {v(o,4)}, {v(T+hh)}, s[{S_WS}:{S_WS+3}], s{sT} offen offset:{nbl*1024}")
            if tb < 3: A(f"s_add_u32 s{sT}, s{sT}, 16384")
        ST.at(6)
        if STAMP:
            A("s_waitcnt vmcnt(0)")
            ST.at(7)
            A("s_waitcnt lgkmcnt(0)\ns_mov_b32 s76, s58")
            ST.n = 9
            ST.dump(S_WS, sW, 200, sT, 0x8000000, 8)
        A("s_endpgm")
    A.label("L_k1_done")
    A("s_endpgm")
    return name, A.text(), kernel_desc(name, 208, 96), "grid=(256,1,1) block=(512,1,1) lds=131072"


def gen_k2():
    A = Asm(); name = "attn_kernel"
    kernel_begin(A, name)
    O = 0; Q = 64; S = [96, 112]; NEG = 128; DIAG = 144; P = [160, 168]; T = 176; L = [180, 181]; LTOT = 182
    VA = 183; VB = 184; VD = 185; VL = 186; X0 = 187
    Q2 = 192; SL = 224
    VWQ = 232
    VDW = 236
    KF = 0; VF = 32; WF = [0, 16]; XF = 32
    S_WS = 8; S_WQ = 12
    sW = 16; sH = 17; sT1 = 18; sT2 = 19; sSrc = 20; sEnd = 21; sRestart = 22; sThr = 23; sThrLo = 24
    sPhase = 25; sTile = 26; sCnt = 27; sWh = 28; sT = 29
    sX1 = 34; sX2 = 35; sWqo = 36; sFirst = 38
    sRet = 40; sM = 42
    sCtx = 44; sPart = 45
    ST = Stamps(A)
    A("s_cmp_ge_u32 s2, 256\ns_cbranch_scc1 L_k2_done")
    ST.mark()
    if STAMP: A("s_memrealtime s[58:59]")
    A(f"s_load_dwordx2 s[4:5], s[0:1], {KA_WS}")
    A(f"s_load_dwordx2 s[6:7], s[0:1], {KA_WQ}")
    A(f"v_and_b32 {v(VL)}, 63, v0")
    A(f"v_lshrrev_b32 {v(X0)}, 6, v0\ns_nop 0\nv_readfirstlane_b32 s{sW}, {v(X0)}")
    A(f"s_and_b32 s{sH}, s2, 7\ns_lshl_b32 s{sH}, s{sH}, 2\ns_lshr_b32 s{sT}, s2, 3\ns_and_b32 s{sT}, s{sT}, 3\ns_add_u32 s{sH}, s{sH}, s{sT}")
    A(f"s_lshr_b32 s{sT2}, s2, 5\ns_sub_u32 s{sT1}, 15, s{sT2}")
    A(f"v_lshlrev_b32 {v(VD)}, 4, {v(VL)}\nv_mov_b32 {v(VA)}, {v(VD)}\nv_add_u32 {v(VB)}, 0x10000, {v(VD)}")
    A(f"s_lshl_b32 s{sT}, s{sT1}, 2\ns_add_u32 s{sT}, s{sT}, s{sW}\ns_mul_i32 s{sX1}, s{sT}, 36864")
    A(f"s_lshl_b32 s{sT}, s{sT2}, 2\ns_add_u32 s{sT}, s{sT}, s{sW}\ns_mul_i32 s{sX2}, s{sT}, 36864")
    X = X0
    A(f"v_lshrrev_b32 {v(X)}, 4, {v(VL)}\nv_lshlrev_b32 {v(X+1)}, 2, {v(X)}\nv_and_b32 {v(X+2)}, 15, {v(VL)}\nv_xor_b32 {v(X+1)}, {v(X+1)}, {v(X+2)}\nv_lshlrev_b32 {v(X+1)}, 4, {v(X+1)}")
    A(f"s_lshl_b32 s{sT}, s{sW}, 4\nv_add_u32 {v(X)}, s{sT}, {v(X)}\nv_lshlrev_b32 {v(X)}, 13, {v(X)}\nv_add_u32 {v(X)}, {v(X)}, {v(X+1)}")
    for j in range(4): A(f"v_add_u32 {v(VDW+j)}, {j*32768 - j*1024}, {v(X)}")
    A(f"v_lshrrev_b32 {v(X)}, 5, {v(VL)}\nv_lshlrev_b32 {v(X)}, 3, {v(X)}\nv_bfe_u32 {v(X+1)}, {v(VL)}, 2, 2\nv_add_u32 {v(X)}, {v(X)}, {v(X+1)}\nv_lshlrev_b32 {v(X)}, 8, {v(X)}")
    A(f"v_bfe_u32 {v(X+2)}, {v(VL)}, 4, 1\nv_lshlrev_b32 {v(X+2)}, 5, {v(X+2)}\nv_add_u32 {v(X)}, {v(X)}, {v(X+2)}")
    A(f"v_and_b32 {v(X+2)}, 3, {v(VL)}\nv_lshlrev_b32 {v(X+2)}, 3, {v(X+2)}\nv_add_u32 {v(X)}, {v(X)}, {v(X+2)}")
    for db in range(4):
        A(f"v_xor_b32 {v(X+2)}, {db}, {v(X+1)}\nv_lshlrev_b32 {v(X+2)}, 6, {v(X+2)}\nv_add_u32 {v(VWQ+db)}, {v(X)}, {v(X+2)}")
    A(f"s_lshl_b32 s{sWqo}, s{sH}, 8")
    A(f"s_mov_b32 s{sThr}, {hex(f32bits(2.0**20))}\ns_mov_b32 s{sThrLo}, {hex(f32bits(2.0**-20))}")
    A(f"s_lshl_b32 s{sPart}, s{sW}, 12")
    A(f"s_lshl_b32 s{sSrc}, s{sH}, 20\ns_add_u32 s{sSrc}, s{sSrc}, {hex(WS_KV)}\ns_add_u32 s{sSrc}, s{sSrc}, s{sPart}\ns_mov_b32 s{sRestart}, s{sSrc}")
    A(f"s_add_u32 s{sT}, s{sT1}, 1\ns_lshl_b32 s{sT}, s{sT}, 16\ns_add_u32 s{sEnd}, s{sSrc}, s{sT}")
    A("s_waitcnt lgkmcnt(0)")
    srd(A, S_WS, 4, WS_BYTES)
    srd(A, S_WQ, 6, 576 * 4096 * 2)
    WS = f"s[{S_WS}:{S_WS+3}]"; WQ = f"s[{S_WQ}:{S_WQ+3}]"
    A(f"s_cmp_lg_u32 s2, 0\ns_cbranch_scc1 L_k2_noside")
    A(f"s_cmp_eq_u32 s{sW}, 0\ns_cbranch_scc0 L_k2_side1")
    A(f"s_mov_b32 s{sT}, {hex(WS_R)}")
    for q in range(8):
        if q == 4: A(f"s_add_u32 s{sT}, s{sT}, 4096")
        A(f"buffer_load_dwordx4 {v(4*q,4)}, {v(VD)}, {WS}, s{sT} offen offset:{1024*(q%4)}")
    A("s_branch L_k2_noside")
    A.label("L_k2_side1")
    A(f"s_cmp_eq_u32 s{sW}, 1\ns_cbranch_scc0 L_k2_noside")
    for i in range(4): A(f"v_mov_b32 {v(i)}, 0")
    for q in range(18):
        if q % 4 == 0: A(f"s_mov_b32 s{sT}, {hex(WS_Y + 1024*q)}")
        A(f"buffer_store_dwordx4 {v(0,4)}, {v(VD)}, {WS}, s{sT} offen offset:{1024*(q%4)}")
    A.label("L_k2_noside")
    vm = VM(A)
    def xload(c, j, til):
        r = XF + ((c & 1) * 8 + j * 2 + til) * 4
        sx = sT + til
        return f"buffer_load_dwordx4 {a(r,4)}, {v(VD)}, {WS}, s{sx} offen offset:{1024*j}"
    def xbase(c):
        return [f"s_add_u32 s{sT}, s{sX1}, {4096*c}", f"s_add_u32 s{sT+1}, s{sX2}, {4096*c}"]
    def wdma(c):
        A(f"s_add_u32 m0, s{sPart}, {16384*c}")
        A(f"s_add_u32 s{sT+2}, s{sWqo}, {c*64*8192}")
        for j in range(4):
            vm.issue(f"buffer_load_dwordx4 {v(VDW+j)}, {WQ}, s{sT+2} offen offset:{1024*j} lds", ('W', c))
    for c in range(2):
        for x in xbase(c): A(x)
        for j in range(4):
            for til in range(2): vm.issue(xload(c, j, til), ('X', c, j))
        wdma(c)
    for c in range(2, 9): wdma(c)
    ST.mark()
    A(f"s_cmp_lg_u32 s2, 0\ns_cbranch_scc1 L_k2_notopk\ns_cmp_lg_u32 s{sW}, 0\ns_cbranch_scc1 L_k2_notopk")
    A("s_waitcnt vmcnt(52)")
    KY = 32; TM = 64
    A(f"v_lshlrev_b32 {v(TM)}, 2, {v(VL)}\nv_sub_u32 {v(TM)}, 2047, {v(TM)}\ns_mov_b32 s{sT}, 0xffff0000")
    for j in range(32):
        q, cc = j // 4, j % 4
        A(f"v_ashrrev_i32 {v(TM+1)}, 31, {v(j)}\nv_or_b32 {v(TM+1)}, 0x80000000, {v(TM+1)}\nv_xor_b32 {v(TM+1)}, {v(TM+1)}, {v(j)}")
        A(f"v_subrev_u32 {v(TM+2)}, {256*q+cc}, {v(TM)}\nv_and_or_b32 {v(KY+j)}, {v(TM+1)}, s{sT}, {v(TM+2)}")
    A(f"s_mov_b32 s{sT+1}, 0\nv_mov_b32 {v(TM+8)}, 0")
    for rnd in range(8):
        for j in range(32): A(f"v_subrev_u32 {v(j)}, s{sT+1}, {v(KY+j)}")
        A(f"v_max3_u32 {v(TM)}, {v(0)}, {v(1)}, {v(2)}")
        for j in range(3, 31, 2): A(f"v_max3_u32 {v(TM)}, {v(TM)}, {v(j)}, {v(j+1)}")
        A(f"v_max_u32 {v(TM)}, {v(TM)}, {v(31)}")
        for ctl in ("quad_perm:[1,0,3,2]", "quad_perm:[2,3,0,1]", "row_half_mirror", "row_mirror"):
            A(f"v_max_u32_dpp {v(TM)}, {v(TM)}, {v(TM)} {ctl} row_mask:0xf bank_mask:0xf")
        A(f"v_mov_b32 {v(TM+1)}, {v(TM)}\nv_permlane16_swap_b32 {v(TM)}, {v(TM+1)}\nv_max_u32 {v(TM)}, {v(TM)}, {v(TM+1)}")
        A(f"v_mov_b32 {v(TM+1)}, {v(TM)}\nv_permlane32_swap_b32 {v(TM)}, {v(TM+1)}\nv_max_u32 {v(TM)}, {v(TM)}, {v(TM+1)}")
        A(f"v_readfirstlane_b32 s{sT+2}, {v(TM)}\ns_nop 3\ns_add_u32 s{sT+1}, s{sT+1}, s{sT+2}")
        A(f"v_writelane_b32 {v(TM+8)}, s{sT+1}, {rnd}")
    K8 = TM + 8
    A(f"v_and_b32 {v(TM)}, 0xffff, {v(K8)}\nv_sub_u32 {v(TM)}, 2047, {v(TM)}")
    A(f"v_ashrrev_i32 {v(TM+1)}, 31, {v(K8)}\nv_not_b32 {v(TM+1)}, {v(TM+1)}\nv_or_b32 {v(TM+1)}, 0x80000000, {v(TM+1)}")
    A(f"v_xor_b32 {v(TM+1)}, {v(TM+1)}, {v(K8)}\nv_and_b32 {v(TM+1)}, 0xffff0000, {v(TM+1)}")
    A(f"v_mul_f32 {v(TM+1)}, {hex(f32bits(-math.log2(math.e)))}, {v(TM+1)}\nv_exp_f32 {v(TM+1)}, {v(TM+1)}\nv_add_f32 {v(TM+1)}, 1.0, {v(TM+1)}\nv_rcp_f32 {v(TM+1)}, {v(TM+1)}")
    A(f"v_cvt_pk_bf16_f32 {v(TM+1)}, {v(TM+1)}, {v(TM+1)}\nv_and_b32 {v(TM+1)}, 0xffff0000, {v(TM+1)}")
    A(f"v_lshlrev_b32 {v(TM+2)}, 2, {v(VL)}\ns_mov_b32 s{sT}, {hex(WS_SEL)}")
    A("s_mov_b64 exec, 0xff")
    A(f"buffer_store_dword {v(TM)}, {v(TM+2)}, {WS}, s{sT} offen")
    A(f"buffer_store_dword {v(TM+1)}, {v(TM+2)}, {WS}, s{sT} offen offset:32")
    A("s_mov_b64 exec, -1")
    A.label("L_k2_notopk")
    def wreads(fs, c, ks):
        return [f"ds_read_b64_tr_b16 {a(WF[fs]+4*db+2*e,2)}, {v(VWQ+db)} offset:{(c%4)*16384 + (16*ks+4*e)*256}" for db in range(4) for e in range(2)]
    def kvdma(lst):
        for j in range(4):
            lst.append(f"buffer_load_dwordx4 {v(VD)}, {WS}, s{sSrc} offen offset:{1024*j} lds")
    vm.wait(('W', 0)); A("s_barrier")
    ST.mark()
    for x in wreads(0, 0, 0): A(x)
    for c in range(9):
        for ks in range(4):
            fs = ks & 1
            fill = [[] for _ in range(8)]
            post = []
            vm.wait(('X', c, ks))
            if ks < 3:
                A("s_waitcnt lgkmcnt(0)")
                rd = wreads(1 - fs, c, ks + 1)
            else:
                A("s_waitcnt lgkmcnt(0)")
                if c < 8: vm.wait(('W', c + 1))
                else: vm.wait(('KV', 0))
                A("s_barrier")
                if c in (3, 7):
                    for db in range(4): A(f"v_add_u32 {v(VWQ+db)}, 0x10000, {v(VWQ+db)}")
                rd = wreads(1 - fs, c + 1, 0) if c < 8 else [None] * 8
            g = 0
            for db in range(4):
                for til in range(2):
                    acc = v(til * 64 + db * 16, 16)
                    cin = "0" if (c == 0 and ks == 0) else acc
                    xf = a(XF + ((c & 1) * 8 + ks * 2 + til) * 4, 4)
                    A(f"{MFMA} {acc}, {a(WF[fs]+4*db,4)}, {xf}, {cin}")
                    if rd[g]: A(rd[g])
                    if ks == 3 and c <= 4 and g == 1:
                        lab = None
                        if c >= 3:
                            lab = A.newlabel("k2_nov"); A(f"s_cmp_ge_u32 s{sW}, 2\ns_cbranch_scc1 {lab}")
                        A(f"s_add_u32 m0, s{sPart}, {16384*c}\ns_nop 0")
                        l = []; kvdma(l)
                        for x in l:
                            if c < 3: vm.issue(x, ('KV', c))
                            else: A(x)
                        A(f"s_add_u32 s{sSrc}, s{sSrc}, 16384")
                        if lab: A.label(lab)
                    g += 1
            if c + 2 < 9:
                for x in xbase(c + 2): A(x)
                for til in range(2): vm.issue(xload(c + 2, ks, til), ('X', c + 2, ks))
    ST.mark()
    for g in range(8): A(f"ds_read_b128 {a(KF+4*g,4)}, {v(VA)} offset:{1024*g}")
    A(f"s_cmp_lt_u32 s{sW}, 2\ns_cselect_b32 s{sT}, 5, 3\ns_lshl_b32 s{sT}, s{sT}, 14\ns_add_u32 m0, s{sT}, s{sPart}")
    qs = hex(f32bits(math.log2(math.e) / math.sqrt(128.0)))
    A(f"s_mov_b32 s{sT}, {qs}")
    for til, dst in ((1, Q2), (0, Q)):
        for i in range(64): A(f"v_mul_f32 {v(til*64+i)}, s{sT}, {v(til*64+i)}")
        for i in range(32): A(f"v_cvt_pk_bf16_f32 {v(dst+i)}, {v(til*64+2*i)}, {v(til*64+2*i+1)}")
    A(f"s_mov_b32 s{sPhase}, 0\ns_mov_b32 s{sTile}, s{sT1}")
    ST.mark()
    A.label("L_k2_phase")
    A(f"v_and_b32 {v(X0)}, 31, {v(VL)}\nv_lshrrev_b32 {v(X0+1)}, 5, {v(VL)}\nv_lshlrev_b32 {v(X0+1)}, 2, {v(X0+1)}\nv_sub_u32 {v(X0)}, {v(X0)}, {v(X0+1)}")
    A(f"v_mov_b32 {v(X0+1)}, 0xff800000\nv_mov_b32 {v(LTOT)}, 0")
    for r in range(16):
        cr = 8 * (r // 4) + r % 4
        A(f"v_cmp_gt_i32 vcc, {cr}, {v(X0)}\nv_mov_b32 {v(NEG+r)}, 0\ns_nop 0\nv_cndmask_b32 {v(DIAG+r)}, 0, {v(X0+1)}, vcc")
    A(f"s_cmp_eq_u32 s{sTile}, 0\ns_cselect_b32 s{sWh}, s{sW}, 99")
    A(f"s_sub_u32 s{sCnt}, s{sTile}, 1")
    slow_sites = []
    def step(i, qk=True, sm_prev=True, sm_next=True, pv=True, masked=None, first=False, pv0=False, dma=True, vreload=None, check=True, ltot=True):
        u = i & 1
        Sw, Sr, Pr = S[u], S[1 - u], P[u]
        fill = [[] for _ in range(16)]; mem = [[] for _ in range(16)]
        def ex(Sx, e): return f"v_exp_f32 {v(T + e % 4)}, {v(Sx + e)}"
        def ad(Lx, e): return f"v_add_f32 {v(Lx)}, {v(Lx)}, {v(T + e % 4)}"
        def cv(Px, e): return f"v_cvt_pk_bf16_f32 {v(Px + e // 2)}, {v(T + (e - 1) % 4)}, {v(T + e % 4)}"
        if pv:
            vb, vs = (VB, i + 2) if i < 2 else (VA, i - 2)
            for g in range(8): mem[g].append(f"ds_read_b128 {a(VF+4*g,4)}, {v(vb)} offset:{vs*16384 + 8192 + 1024*g}")
        if qk:
            kb, ks_ = (VA, i + 1) if i < 3 else (VB, 0)
            for g in range(8): mem[8 + g].append(f"ds_read_b128 {a(KF+4*g,4)}, {v(kb)} offset:{ks_*16384 + 1024*g}")
        if vreload is not None:
            for g in range(8): mem[8 + g].append(f"ds_read_b128 {a(VF+4*g,4)}, {v(VB)} offset:{vreload*16384 + 8192 + 1024*g}")
        if dma:
            for j, g in enumerate((1, 5, 9, 13)):
                mem[g].append(f"buffer_load_dwordx4 {v(VD)}, {WS}, s{sSrc} offen offset:{1024*j} lds")
            fill[13].append(f"s_add_u32 s{sSrc}, s{sSrc}, 16384")
            fill[14].append(f"s_add_u32 m0, m0, 16384")
            fill[15].append(f"s_and_b32 m0, m0, 0x1ffff")
            if u == 0:
                fill[15].append(f"s_cmp_eq_u32 s{sSrc}, s{sEnd}\ns_cselect_b32 s{sSrc}, s{sRestart}, s{sSrc}")
        if sm_prev:
            for g in range(10): fill[g].insert(0, ex(Sr, g + 6))
            for g in range(11):
                e = g + 5
                fill[g].append(ad(L[1 - u], e))
                if e & 1: fill[g].append(cv(P[1 - u], e))
            if first:
                fill[11].append(f"v_mov_b32 {v(X0)}, {v(L[1-u])}\nv_mov_b32 {v(X0+1)}, {v(L[1-u])}\nv_cmp_lt_f32 s[{sM}:{sM+1}], s{sThr}, {v(L[1-u])}")
                fill[12].append(f"v_permlane32_swap_b32 {v(X0)}, {v(X0+1)}")
                fill[13].append(f"v_add_f32 {v(X0)}, {v(X0)}, {v(X0+1)}")
                fill[14].append(f"v_cmp_gt_f32 vcc, s{sThrLo}, {v(X0)}")
            else:
                fill[11].append(f"v_cmp_lt_f32 vcc, s{sThr}, {v(L[1-u])}")
        if ltot: fill[1].append(f"v_add_f32 {v(LTOT)}, {v(LTOT)}, {v(L[u])}")
        if sm_next:
            for g in range(10, 16): fill[g].insert(0, ex(Sw, g - 10))
            fill[12].append(f"v_add_f32 {v(L[u])}, {v(T)}, {v(T+1)}"); fill[12].append(cv(P[u], 1))
            fill[13].append(ad(L[u], 2)); fill[14].append(ad(L[u], 3)); fill[14].append(cv(P[u], 3)); fill[15].append(ad(L[u], 4))
        if i == 3 and qk: fill[15].append(f"v_swap_b32 {v(VA)}, {v(VB)}")
        for g in range(16):
            has = (qk and g < 8) or (pv and g >= 8)
            if has and g % 4 == 0:
                if g < 8: n = (4 if g == 0 else (4 if pv else 0))
                else: n = (4 if g == 8 else (4 if (qk or vreload is not None) else 0))
                A(f"s_waitcnt lgkmcnt({n})")
            if g < 8 and qk:
                if g == 0 and masked is not None:
                    if i == 3 and masked == sW:
                        A(f"{MFMA} {v(Sw,16)}, {a(KF,4)}, {v(Q,4)}, {v(DIAG,16)}")
                    else:
                        l1 = A.newlabel("k2_m"); l2 = A.newlabel("k2_m")
                        A(f"s_cmp_gt_u32 s{masked}, {i}\ns_cbranch_scc1 {l1}")
                        A(f"{MFMA} {v(Sw,16)}, {a(KF,4)}, {v(Q,4)}, {v(DIAG,16)}\ns_branch {l2}")
                        A.label(l1); A(f"{MFMA} {v(Sw,16)}, {a(KF,4)}, {v(Q,4)}, {v(NEG,16)}"); A.label(l2)
                else:
                    A(f"{MFMA} {v(Sw,16)}, {a(KF+4*g,4)}, {v(Q+4*g,4)}, {v(NEG,16) if g == 0 else v(Sw,16)}")
            if g >= 8 and pv:
                m = (g - 8) // 4; db = g % 4
                cin = "0" if (pv0 and m == 0) else v(O + 16 * db, 16)
                A(f"{MFMA} {v(O+16*db,16)}, {a(VF+4*(g-8),4)}, {v(Pr+4*m,4)}, {cin}")
            for x in mem[g]: A(x)
            for x in fill[g]: A(x)
            if g == 3 and masked is not None and i < 3:
                l1 = A.newlabel("k2_f")
                A(f"s_cmp_eq_u32 s{masked}, {i}\ns_cbranch_scc0 {l1}")
                for r in range(16): A(f"v_mov_b32 {v(DIAG+r)}, 0xff800000")
                A.label(l1)
            if g == 7 and u == 0 and dma:
                A("s_waitcnt vmcnt(8)\ns_barrier")
        if sm_prev and check:
            site = A.newlabel("k2_site")
            if first:
                A(f"s_or_b64 vcc, vcc, s[{sM}:{sM+1}]\ns_cbranch_scc1 {site}_s")
            else:
                A(f"s_cbranch_vccnz {site}_s")
            A.label(site + "_r")
            slow_sites.append((site, u, first))
    step(0, sm_prev=False, pv=False, masked=sWh, ltot=False)
    step(1, pv=False, masked=sWh, first=True, ltot=False)
    step(2, masked=sWh, pv0=True)
    step(3, masked=sWh)
    A(f"s_cmp_eq_u32 s{sTile}, 0\ns_cbranch_scc1 L_k2_drain")
    A(f"s_cmp_eq_u32 s{sCnt}, 0\ns_cbranch_scc1 L_k2_tail")
    A(".p2align 6")
    A.label("L_k2_loop")
    for i in range(4): step(i)
    A(f"s_sub_u32 s{sCnt}, s{sCnt}, 1\ns_cmp_lg_u32 s{sCnt}, 0\ns_cbranch_scc1 L_k2_loop")
    A.label("L_k2_tail")
    for i in range(4): step(i, masked=sW)
    A.label("L_k2_drain")
    step(0, qk=False, sm_next=False, dma=False, vreload=3)
    A(f"v_add_f32 {v(LTOT)}, {v(LTOT)}, {v(L[1])}")
    for g in range(8):
        if g % 4 == 0: A(f"s_waitcnt lgkmcnt({4 if g == 0 else 0})")
        m = g // 4; db = g % 4
        A(f"{MFMA} {v(O+16*db,16)}, {a(VF+4*g,4)}, {v(P[1]+4*m,4)}, {v(O+16*db,16)}")
    A(f"v_mov_b32 {v(X0)}, {v(LTOT)}\nv_permlane32_swap_b32 {v(X0)}, {v(LTOT)}\nv_add_f32 {v(LTOT)}, {v(LTOT)}, {v(X0)}\nv_rcp_f32 {v(LTOT)}, {v(LTOT)}")
    A(f"s_lshl_b32 s{sT}, s{sTile}, 2\ns_add_u32 s{sT}, s{sT}, s{sW}\ns_lshl_b32 s{sT}, s{sT}, 18\ns_lshl_b32 s{sT+1}, s{sH}, 13\ns_add_u32 s{sT}, s{sT}, s{sT+1}\ns_add_u32 s{sT}, s{sT}, {hex(WS_CTX)}")
    A(f"s_add_u32 s{sT+1}, s{sT}, 4096")
    for f in range(8):
        b = O + 8 * f; o = S[0] + 4 * f
        for q in range(8): A(f"v_mul_f32 {v(b+q)}, {v(b+q)}, {v(LTOT)}")
        for q in range(4): A(f"v_cvt_pk_bf16_f32 {v(o+q)}, {v(b+2*q)}, {v(b+2*q+1)}")
        A(f"buffer_store_dwordx4 {v(o,4)}, {v(VD)}, {WS}, s{sT + f//4} offen offset:{1024*(f%4)}")
    A(f"s_cmp_eq_u32 s{sPhase}, 1\ns_cbranch_scc1 L_k2_fin")
    ST.at(5)
    A(f"s_mov_b32 s{sPhase}, 1\ns_mov_b32 s{sTile}, s{sT2}")
    for i in range(32): A(f"v_mov_b32 {v(Q+i)}, {v(Q2+i)}")
    A("s_branch L_k2_phase")
    A.label("L_k2_fin")
    if STAMP:
        ST.at(6)
        A("s_waitcnt vmcnt(0)")
        ST.at(7)
        A("s_waitcnt lgkmcnt(0)\ns_mov_b32 s76, s58")
        ST.n = 9
        ST.dump(S_WS, sW, X0, sT, 0x8100000, 4)
    A.label("L_k2_done")
    A("s_endpgm")
    for site, u, first in slow_sites:
        A.label(site + "_s")
        A(f"s_mov_b64 s[{sFirst}:{sFirst+1}], {-1 if first else 0}")
        A(f"s_call_b64 s[{sRet}:{sRet+1}], L_k2_slow{u}")
        A(f"s_branch {site}_r")
    for u in range(2):
        Sw, Sr = S[u], S[1 - u]
        A.label(f"L_k2_slow{u}")
        A("s_nop 15\ns_nop 15")
        M_ = SL; D_ = SL + 1; F_ = SL + 2
        A(f"v_max3_f32 {v(M_)}, {v(Sr)}, {v(Sr+1)}, {v(Sr+2)}")
        for e in range(3, 15, 2): A(f"v_max3_f32 {v(M_)}, {v(M_)}, {v(Sr+e)}, {v(Sr+e+1)}")
        A(f"v_max_f32 {v(M_)}, {v(M_)}, {v(Sr+15)}")
        A(f"v_mov_b32 {v(D_)}, {v(M_)}\nv_permlane32_swap_b32 {v(M_)}, {v(D_)}\nv_max_f32 {v(M_)}, {v(M_)}, {v(D_)}")
        A(f"v_max_f32 {v(F_)}, 0, {v(M_)}")
        A(f"v_cndmask_b32 {v(D_)}, {v(F_)}, {v(M_)}, s[{sFirst}:{sFirst+1}]")
        A(f"v_exp_f32 {v(F_)}, -{v(F_)}")
        for r in range(16):
            for blk in (NEG, DIAG, Sr, Sw): A(f"v_sub_f32 {v(blk+r)}, {v(blk+r)}, {v(D_)}")
        for r in range(64): A(f"v_mul_f32 {v(O+r)}, {v(O+r)}, {v(F_)}")
        A(f"v_mul_f32 {v(LTOT)}, {v(LTOT)}, {v(F_)}")
        for (Sx, Lx, Px, n) in ((Sr, L[1-u], P[1-u], 16), (Sw, L[u], P[u], 6)):
            for e in range(n):
                A(f"v_exp_f32 {v(T + e % 4)}, {v(Sx+e)}")
                if n == 6 and e == 5: break
                if e == 1: A(f"v_add_f32 {v(Lx)}, {v(T)}, {v(T+1)}")
                elif e > 1: A(f"v_add_f32 {v(Lx)}, {v(Lx)}, {v(T + e % 4)}")
                if e & 1: A(f"v_cvt_pk_bf16_f32 {v(Px + e//2)}, {v(T + (e-1) % 4)}, {v(T + e % 4)}")
        A("s_nop 3")
        A(f"s_setpc_b64 s[{sRet}:{sRet+1}]")
    return name, A.text(), kernel_desc(name, 256 + 96, 96, accum=256), "grid=(256,1,1) block=(256,1,1) lds=147456"


NFFN = 48
def gen_k3():
    A = Asm(); name = "oproj_kernel"
    kernel_begin(A, name)
    S_WS = 8; S_B = 12; S_X = 16; S_OUT = 20; S_DBG = 24; S_B2 = 28; S_B3 = 32
    sW = 36; sXc = 37; sJ = 38; sT = 39
    sIdx = 44; sSig = 52
    sC = 60 + 24; sWo = sC + 1; sM = sC + 2; sCnt = sC + 3; sRT = sC + 4; sCT = sC + 5; sMask = 90
    VL = 250; X = 251
    ST = Stamps(A)
    A(f"s_cmp_ge_u32 s2, {192+NFFN}\ns_cbranch_scc1 L_k3_done")
    ST.mark()
    if STAMP: A("s_memrealtime s[82:83]")
    A(f"s_load_dwordx2 s[4:5], s[0:1], {KA_WS}")
    A(f"s_load_dwordx2 s[6:7], s[0:1], {KA_DBG}")
    A(f"v_and_b32 {v(VL)}, 63, v0")
    A(f"v_lshrrev_b32 {v(X)}, 6, v0\ns_nop 0\nv_readfirstlane_b32 s{sW}, {v(X)}")
    A(f"s_and_b32 s{sXc}, s2, 7\ns_lshr_b32 s{sJ}, s2, 3")
    VR = 244; VCH = 247
    for q in range(3):
        A(f"v_add_u32 {v(X)}, {64*q}, {v(VL)}\nv_mul_u32_u24 {v(VR+q)}, 0xaab, {v(X)}\nv_lshrrev_b32 {v(VR+q)}, 15, {v(VR+q)}")
        A(f"v_mul_u32_u24 {v(X+1)}, 12, {v(VR+q)}\nv_sub_u32 {v(X+1)}, {v(X)}, {v(X+1)}\nv_lshlrev_b32 {v(VCH+q)}, 4, {v(X+1)}")
    A("s_waitcnt lgkmcnt(0)")
    srd(A, S_WS, 4, WS_BYTES); srd(A, S_DBG, 6, 256)
    WS = f"s[{S_WS}:{S_WS+3}]"
    A(f"s_add_u32 s4, s4, {hex(WS_SEL)}\ns_addc_u32 s5, s5, 0")
    A(f"s_load_dwordx16 s[{sIdx}:{sIdx+15}], s[4:5], 0")
    A(f"s_cmp_lt_u32 s{sJ}, 6\ns_cbranch_scc1 L_k3_ffn")
    A(f"s_load_dwordx2 s[4:5], s[0:1], {KA_WO}\ns_load_dwordx2 s[6:7], s[0:1], {KA_X}\ns_load_dwordx2 s[2:3], s[0:1], {KA_OUT}") if False else None
    A(f"s_load_dwordx2 s[94:95], s[0:1], {KA_WO}\ns_load_dwordx2 s[96:97], s[0:1], {KA_X}\ns_load_dwordx2 s[98:99], s[0:1], {KA_OUT}")
    A(f"s_sub_u32 s{sJ}, s{sJ}, 6\ns_mul_i32 s{sT}, s{sJ}, 43\ns_lshr_b32 s{sT}, s{sT}, 8")
    A(f"s_mul_i32 s{sT+1}, s{sT}, 6\ns_sub_u32 s{sCT}, s{sJ}, s{sT+1}\ns_lshl_b32 s{sRT}, s{sXc}, 2\ns_add_u32 s{sRT}, s{sRT}, s{sT}")
    ACC = 0; WF = [96, 108]; VDW = 120; VC0 = 123; VC1 = 124; VRD = 125; CF = 0
    for q in range(3):
        A(f"v_mul_u32_u24 {v(VDW+q)}, 1152, {v(VR+q)}\nv_add_u32 {v(VDW+q)}, {v(VDW+q)}, {v(VCH+q)}")
        if q: A(f"v_subrev_u32 {v(VDW+q)}, {1024*q}, {v(VDW+q)}")
    A(f"v_lshlrev_b32 {v(VC0)}, 4, {v(VL)}\nv_add_u32 {v(VC1)}, 0x40000, {v(VC0)}")
    A(f"v_lshrrev_b32 {v(X)}, 5, {v(VL)}\nv_lshlrev_b32 {v(X)}, 2, {v(X)}\nv_bfe_u32 {v(X+1)}, {v(VL)}, 2, 2\nv_add_u32 {v(X)}, {v(X)}, {v(X+1)}\nv_mul_u32_u24 {v(X)}, 192, {v(X)}")
    A(f"v_bfe_u32 {v(X+1)}, {v(VL)}, 4, 1\nv_lshlrev_b32 {v(X+1)}, 5, {v(X+1)}\nv_add_u32 {v(X)}, {v(X)}, {v(X+1)}")
    A(f"v_and_b32 {v(X+1)}, 3, {v(VL)}\nv_lshlrev_b32 {v(X+1)}, 3, {v(X+1)}\nv_add_u32 {v(X)}, {v(X)}, {v(X+1)}")
    A(f"s_mul_i32 s{sM}, s{sW}, 24576\nv_add_u32 {v(VRD)}, s{sM}, {v(X)}")
    A(f"s_lshl_b32 s{sC}, s{sRT}, 19\ns_lshl_b32 s{sT}, s{sW}, 16\ns_add_u32 s{sC}, s{sC}, s{sT}\ns_add_u32 s{sC}, s{sC}, {hex(WS_CTX)}")
    A(f"s_mul_i32 s{sWo}, s{sW}, {1024*1152}\ns_mul_i32 s{sT}, s{sCT}, 192\ns_add_u32 s{sWo}, s{sWo}, s{sT}")
    A("s_waitcnt lgkmcnt(0)")
    srd(A, S_B, 94, 4096 * 576 * 2); srd(A, S_X, 96, 2048 * 576 * 2); srd(A, S_OUT, 98, 2048 * 576 * 2)
    WO = f"s[{S_B}:{S_B+3}]"
    def loads(slot):
        l = [f"s_add_u32 m0, s{sM}, {3072*slot}\ns_nop 0"]
        for q in range(3): l.append(f"buffer_load_dwordx4 {v(VDW+q)}, {WO}, s{sWo} offen offset:{1024*q} lds")
        l.append(f"s_add_u32 s{sWo}, s{sWo}, 18432")
        l += [f"buffer_load_dwordx4 {a(CF+8*slot,4)}, {v(VC0)}, {WS}, s{sC} offen",
              f"buffer_load_dwordx4 {a(CF+8*slot+4,4)}, {v(VC1)}, {WS}, s{sC} offen",
              f"s_add_u32 s{sC}, s{sC}, 1024"]
        return l
    def trs(fs, slot):
        return [f"ds_read_b64_tr_b16 {v(WF[fs]+4*mb+2*e,2)}, {v(VRD)} offset:{3072*slot + 1536*e + 64*mb}" for mb in range(3) for e in range(2)]
    for slot in range(8):
        for x in loads(slot): A(x)
    for i in range(96): A(f"v_mov_b32 {v(ACC+i)}, 0")
    ST.mark()
    A("s_waitcnt vmcnt(35)")
    for x in trs(0, 0): A(x)
    A(f"s_mov_b32 s{sCnt}, 0")
    ST.mark()
    A(".p2align 6")
    A.label("L_k3_loop")
    A(f"s_cmp_lt_u32 s{sCnt}, 7\ns_cselect_b32 s{sC}, s{sC}, {hex(OOB)}\ns_cselect_b32 s{sWo}, s{sWo}, {hex(OOB)}")
    for slot in range(8):
        fs = slot & 1
        A("s_waitcnt vmcnt(30) lgkmcnt(0)")
        tr = trs(1 - fs, (slot + 1) % 8); ld = loads(slot)
        g = 0
        for mb in range(3):
            for qb in range(2):
                acc = v(ACC + (mb * 2 + qb) * 16, 16)
                A(f"{MFMA} {acc}, {v(WF[fs]+4*mb,4)}, {a(CF+8*slot+4*qb,4)}, {acc}")
                A(tr[g])
                if g == 0: A(ld[0].split("\n")[0])
                if g in (1, 2, 3, 4): A(ld[g])
                g += 1
        for x in ld[5:]: A(x)
    A(f"s_add_u32 s{sCnt}, s{sCnt}, 1\ns_cmp_lt_u32 s{sCnt}, 8\ns_cbranch_scc1 L_k3_loop")
    ST.mark()
    RX = 96; RN = 108; VO = 126; VO1 = 127; ROW = 128
    A(f"v_and_b32 {v(X)}, 31, {v(VL)}\ns_lshl_b32 s{sT}, s{sRT}, 6\nv_add_u32 {v(ROW)}, s{sT}, {v(X)}\nv_add_u32 {v(ROW+1)}, 32, {v(ROW)}")
    A(f"v_mul_u32_u24 {v(VO)}, 1152, {v(ROW)}\nv_lshrrev_b32 {v(X+1)}, 5, {v(VL)}\nv_lshlrev_b32 {v(X+1)}, 3, {v(X+1)}")
    A(f"s_mul_i32 s{sT}, s{sCT}, 192\ns_lshl_b32 s{sT+1}, s{sW}, 4\ns_add_u32 s{sT}, s{sT}, s{sT+1}\nv_add_u32 {v(X+1)}, s{sT}, {v(X+1)}")
    A(f"v_add_u32 {v(VO)}, {v(VO)}, {v(X+1)}\nv_add_u32 {v(VO1)}, 36864, {v(VO)}")
    A(f"s_mov_b32 s{sT+2}, {hex(WS_XNR)}")
    A("s_waitcnt vmcnt(0) lgkmcnt(0)")
    for mb in range(3):
        for qb in range(2):
            tau = mb * 2 + qb
            A(f"buffer_load_dwordx2 {v(RX+2*tau,2)}, {v(VO+qb)}, s[{S_X}:{S_X+3}], 0 offen offset:{64*mb}")
            A(f"buffer_load_dwordx2 {v(RN+2*tau,2)}, {v(VO+qb)}, {WS}, s{sT+2} offen offset:{64*mb}")
    A("s_barrier")
    VWA = 130; VWB = 131; VRA = 132
    A(f"s_mul_i32 s{sT}, s{sW}, 6144\nv_add_u32 {v(VWA)}, s{sT}, {v(VC0)}\nv_add_u32 {v(VWB)}, 49152, {v(VWA)}\nv_add_u32 {v(VRA)}, s{sM}, {v(VC0)}")
    for j in range(4):
        for tau in range(6):
            A(f"ds_write_b128 {v(VWA if j < 2 else VWB)}, {v(ACC+16*tau+4*j,4)} offset:{(j%2)*24576 + 1024*tau}")
    SEL = 134; SG = 136
    for qb in range(2):
        A(f"v_mov_b32 {v(SEL+qb)}, -1\nv_mov_b32 {v(SG+qb)}, 0")
        for t_ in range(8):
            A(f"v_cmp_eq_u32 vcc, s{sIdx+t_}, {v(ROW+qb)}\nv_mov_b32 {v(X+2)}, {2304*t_}\nv_mov_b32 {v(X+3)}, s{sSig+t_}")
            A(f"v_cndmask_b32 {v(SEL+qb)}, {v(SEL+qb)}, {v(X+2)}, vcc\nv_cndmask_b32 {v(SG+qb)}, {v(SG+qb)}, {v(X+3)}, vcc")
    A("s_waitcnt lgkmcnt(0)\ns_barrier")
    R = 140
    for s_ in range(4):
        for tau in range(6):
            A(f"ds_read_b128 {v(R+(s_*6+tau)*4,4)}, {v(VRA)} offset:{6144*s_ + 1024*tau}")
    YV = 0
    for i in range(24): A(f"v_mov_b32 {v(YV+i)}, 0")
    A(f"v_max_i32 {v(X+2)}, {v(SEL)}, {v(SEL+1)}\nv_cmp_le_i32 vcc, 0, {v(X+2)}\ns_cbranch_vccz L_k3_nosel")
    A(f"v_mov_b32 {v(X+3)}, 0\ns_mov_b32 s{sT}, 0")
    A.label("L_k3_poll")
    A(f"buffer_load_dword {v(X+2)}, {v(X+3)}, s[{S_DBG}:{S_DBG+3}], 0 offen sc1\ns_waitcnt vmcnt(0)\nv_readfirstlane_b32 s{sT+1}, {v(X+2)}")
    A(f"s_add_u32 s{sT}, s{sT}, 1\ns_cmp_ge_u32 s{sT+1}, {NFFN}\ns_cbranch_scc1 L_k3_polled")
    A(f"s_sleep 8\ns_cmp_lt_u32 s{sT}, 0x100000\ns_cbranch_scc1 L_k3_poll")
    A.label("L_k3_polled")
    A(f"s_mov_b32 s{sT+2}, {hex(WS_Y)}")
    for qb in range(2):
        lab = A.newlabel("k3_sel")
        A(f"v_lshl_add_u32 {v(X+2)}, {v(X+1)}, 1, {v(SEL+qb)}")
        A(f"v_cmp_le_i32 vcc, 0, {v(SEL+qb)}\ns_and_saveexec_b64 s[{sMask}:{sMask+1}], vcc\ns_cbranch_execz {lab}")
        for mb in range(3):
            A(f"buffer_load_dwordx4 {v(YV+(mb*2+qb)*4,4)}, {v(X+2)}, {WS}, s{sT+2} offen offset:{128*mb} sc1")
        A("s_waitcnt vmcnt(0)")
        A.label(lab)
        A(f"s_mov_b64 exec, s[{sMask}:{sMask+1}]")
    A.label("L_k3_nosel")
    A("s_waitcnt vmcnt(0) lgkmcnt(0)")
    for tau in range(6):
        qb = tau & 1; mb = tau // 2
        for i in range(4):
            d = R + tau * 4 + i
            A(f"v_add_f32 {v(d)}, {v(d)}, {v(d+24)}\nv_add_f32 {v(d+48)}, {v(d+48)}, {v(d+72)}")
            src = RX + 2 * tau + i // 2; srn = RN + 2 * tau + i // 2
            if i & 1: A(f"v_and_b32 {v(X+2)}, 0xffff0000, {v(src)}\nv_and_b32 {v(X+3)}, 0xffff0000, {v(srn)}")
            else: A(f"v_lshlrev_b32 {v(X+2)}, 16, {v(src)}\nv_lshlrev_b32 {v(X+3)}, 16, {v(srn)}")
            A(f"v_add_f32 {v(d)}, {v(d)}, {v(d+48)}\nv_fmac_f32 {v(X+3)}, {v(YV+tau*4+i)}, {v(SG+qb)}")
            A(f"v_add_f32 {v(d)}, {v(d)}, {v(X+2)}\nv_add_f32 {v(d)}, {v(d)}, {v(X+3)}")
        o = 24 + 2 * tau
        A(f"v_cvt_pk_bf16_f32 {v(o)}, {v(R+tau*4)}, {v(R+tau*4+1)}\nv_cvt_pk_bf16_f32 {v(o+1)}, {v(R+tau*4+2)}, {v(R+tau*4+3)}")
        A(f"buffer_store_dwordx2 {v(o,2)}, {v(VO+qb)}, s[{S_OUT}:{S_OUT+3}], 0 offen offset:{64*mb}")
    def fin():
        if STAMP:
            ST.at(6)
            A("s_waitcnt vmcnt(0)")
            ST.at(7)
            A("s_waitcnt lgkmcnt(0)\ns_mov_b32 s76, s82")
            ST.n = 9
            ST.dump(S_WS, sW, X, sT, 0x8200000, 4)
        A("s_endpgm")
    fin()
    A.label("L_k3_ffn")
    A(f"s_load_dwordx4 s[92:95], s[0:1], {KA_WG}\ns_load_dwordx2 s[96:97], s[0:1], {KA_WD}")
    sG = sRT
    A(f"s_mul_i32 s{sG}, s{sXc}, 6\ns_add_u32 s{sG}, s{sG}, s{sJ}")
    VDG = 200; VST = 203; VRDS = 204; VXS = 205; VD16 = 206
    STG = 110592
    for q in range(3):
        A(f"v_mul_u32_u24 {v(VDG+q)}, 9216, {v(VR+q)}\nv_add_u32 {v(VDG+q)}, {v(VDG+q)}, {v(VCH+q)}")
    A(f"v_lshlrev_b32 {v(VD16)}, 4, {v(VL)}")
    A(f"s_mul_i32 s{sM}, s{sW}, 12288\ns_add_u32 s{sM}, s{sM}, {STG}\nv_add_u32 {v(VST)}, s{sM}, {v(VD16)}")
    A(f"v_bfe_u32 {v(X+1)}, {v(VL)}, 4, 1\nv_lshlrev_b32 {v(X+1)}, 5, {v(X+1)}\nv_and_b32 {v(X+2)}, 3, {v(VL)}\nv_lshlrev_b32 {v(X+2)}, 3, {v(X+2)}\nv_add_u32 {v(X+1)}, {v(X+1)}, {v(X+2)}")
    A(f"v_lshrrev_b32 {v(X)}, 5, {v(VL)}\nv_bfe_u32 {v(X+2)}, {v(VL)}, 2, 2")
    A(f"v_lshl_add_u32 {v(X+3)}, {v(X)}, 3, {v(X+2)}\nv_mul_u32_u24 {v(X+3)}, 192, {v(X+3)}\nv_add_u32 {v(X+3)}, {v(X+3)}, {v(X+1)}\nv_add_u32 {v(VRDS)}, s{sM}, {v(X+3)}")
    VWD = 207
    A(f"v_lshl_add_u32 {v(X+3)}, {v(X)}, 2, {v(X+2)}\nv_mul_u32_u24 {v(X+3)}, 1152, {v(X+3)}\nv_add_u32 {v(X+3)}, {v(X+3)}, {v(X+1)}")
    A(f"s_lshl_b32 s{sT}, s{sW}, 6\nv_add_u32 {v(VWD)}, s{sT}, {v(X+3)}\nv_add_u32 {v(VWD+1)}, {48*1152}, {v(VWD)}")
    A("s_waitcnt lgkmcnt(0)")
    srd(A, S_B, 92, 576 * 4608 * 2); srd(A, S_B2, 94, 576 * 4608 * 2); srd(A, S_B3, 96, 4608 * 576 * 2)
    A(f"s_mul_i32 s{sT}, s{sW}, {144*9216}\ns_mul_i32 s{sT+1}, s{sG}, 192\ns_add_u32 s{sT}, s{sT}, s{sT+1}")
    A(f"v_mov_b32 {v(VXS)}, {hex(OOB)}")
    for t_ in range(8):
        A(f"s_mul_i32 s{sT+2}, s{sIdx+t_}, 1152")
        A(f"v_writelane_b32 {v(VXS)}, s{sT+2}, {t_}\nv_writelane_b32 {v(VXS)}, s{sT+2}, {32+t_}")
    A(f"v_lshlrev_b32 {v(X)}, 4, {v(X)}\nv_add_u32 {v(VXS)}, {v(VXS)}, {v(X)}")
    A(f"s_mul_i32 s{sT+2}, s{sW}, 288\ns_add_u32 s{sT+2}, s{sT+2}, {hex(WS_XNR)}")
    XS = 96
    for ks in range(9):
        A(f"buffer_load_dwordx4 {v(XS+4*ks,4)}, {v(VXS)}, {WS}, s{sT+2} offen offset:{32*ks}")
    for ks in range(9):
        for mat in range(2):
            sb = S_B if mat == 0 else S_B2
            for q in range(3):
                A(f"buffer_load_dwordx4 {a(((ks*2+mat)*3+q)*4,4)}, {v(VDG+q)}, s[{sb}:{sb+3}], s{sT} offen")
        A(f"s_add_u32 s{sT}, s{sT}, {16*9216}")
    A(f"s_mul_i32 s{sT}, s{sW}, 27648\ns_mul_i32 s{sT+1}, s{sG}, 110592\ns_add_u32 s{sT+1}, s{sT+1}, s{sT}")
    for i in range(27):
        if i % 4 == 0:
            A(f"s_add_u32 m0, s{sT}, {1024*i}\ns_add_u32 s{sT+2}, s{sT+1}, {1024*i}")
        A(f"buffer_load_dwordx4 {v(VD16)}, s[{S_B3}:{S_B3+3}], s{sT+2} offen offset:{1024*(i%4)} lds")
    ST.at(1)
    GW = 132
    n_it = 18
    for it in range(n_it):
        ks, mat = it // 2, it % 2
        A(f"s_waitcnt vmcnt({27 + 3*(n_it-1-it)})" if 27 + 3*(n_it-1-it) <= 63 else "s_waitcnt vmcnt(63)")
        slot = it % 4
        for q in range(3): A(f"ds_write_b128 {v(VST)}, {a((it*3+q)*4,4)} offset:{3072*slot + 1024*q}")
        A("s_waitcnt lgkmcnt(0)")
        w = GW + 12 * (it & 1)
        for fb in range(3):
            for e in range(2): A(f"ds_read_b64_tr_b16 {v(w+4*fb+2*e,2)}, {v(VRDS)} offset:{3072*slot + 768*e + 64*fb}")
        A("s_waitcnt lgkmcnt(0)")
        for fb in range(3):
            acc = v((mat * 3 + fb) * 16, 16)
            A(f"{MFMA} {acc}, {v(w+4*fb,4)}, {v(XS+4*ks,4)}, {'0' if ks == 0 else acc}")
    ST.at(2)
    VCP = 209
    A(f"v_and_b32 {v(X)}, 31, {v(VL)}\nv_lshrrev_b32 {v(X+1)}, 5, {v(VL)}\nv_lshl_add_u32 {v(X+2)}, {v(X+1)}, 3, {v(X)}\nv_lshlrev_b32 {v(X+2)}, 4, {v(X+2)}")
    A(f"v_add_u32 {v(VCP)}, s{sM}, {v(X+2)}\nv_cmp_gt_u32 s[{sMask}:{sMask+1}], 8, {v(X)}")
    A(f"s_lshl_b32 s{sT}, s{sW}, 8\ns_add_u32 s{sT}, s{sT}, {STG}\nv_add_u32 {v(VCP+1)}, s{sT}, {v(X+2)}")
    A(f"s_mov_b64 exec, s[{sMask}:{sMask+1}]")
    for qd in range(24): A(f"ds_write_b128 {v(VCP)}, {v(4*qd,4)} offset:{256*qd}")
    A("s_waitcnt lgkmcnt(0)\ns_barrier")
    for s_ in range(4):
        for blk in range(6): A(f"ds_read_b128 {v((s_*6+blk)*4,4)}, {v(VCP+1)} offset:{12288*s_ + 1024*blk}")
    A("s_waitcnt lgkmcnt(0)")
    for i in range(24):
        A(f"v_add_f32 {v(i)}, {v(i)}, {v(i+24)}\nv_add_f32 {v(i+48)}, {v(i+48)}, {v(i+72)}")
    for i in range(24): A(f"v_add_f32 {v(i)}, {v(i)}, {v(i+48)}")
    def rnd(r):
        A(f"v_cvt_pk_bf16_f32 {v(X)}, {v(r)}, {v(r+1)}\nv_lshlrev_b32 {v(r)}, 16, {v(X)}\nv_and_b32 {v(r+1)}, 0xffff0000, {v(X)}")
    for i in range(0, 24, 2): rnd(i)
    for i in range(12):
        A(f"v_mul_f32 {v(24+i)}, {hex(f32bits(-math.log2(math.e)))}, {v(i)}\nv_exp_f32 {v(24+i)}, {v(24+i)}")
    for i in range(12): A(f"v_add_f32 {v(24+i)}, 1.0, {v(24+i)}\nv_rcp_f32 {v(24+i)}, {v(24+i)}")
    for i in range(12): A(f"v_mul_f32 {v(i)}, {v(i)}, {v(24+i)}")
    for i in range(0, 12, 2): rnd(i)
    for i in range(12): A(f"v_mul_f32 {v(i)}, {v(i)}, {v(12+i)}")
    for i in range(6): A(f"v_cvt_pk_bf16_f32 {v(24+i)}, {v(2*i)}, {v(2*i+1)}")
    HB = STG + 6144
    A(f"s_lshr_b32 s{sT}, s{sW}, 1\ns_lshl_b32 s{sT}, s{sT}, 10\ns_and_b32 s{sT+1}, s{sW}, 1\ns_lshl_b32 s{sT+1}, s{sT+1}, 3\ns_add_u32 s{sT}, s{sT}, s{sT+1}\ns_add_u32 s{sT}, s{sT}, {HB}")
    A(f"v_add_u32 {v(X)}, s{sT}, {v(VD16)}")
    for fb in range(3): A(f"ds_write_b64 {v(X)}, {v(24+2*fb,2)} offset:{2048*fb}")
    A("s_mov_b64 exec, -1")
    A("s_waitcnt vmcnt(0) lgkmcnt(0)\ns_barrier")
    HF = 96
    A(f"v_add_u32 {v(X)}, {HB}, {v(VD16)}")
    for f in range(6): A(f"ds_read_b128 {v(HF+4*f,4)}, {v(X)} offset:{1024*f}")
    YB = STG + 12288
    A(f"v_and_b32 {v(X+1)}, 31, {v(VL)}\nv_mul_u32_u24 {v(X+1)}, 2304, {v(X+1)}\nv_lshrrev_b32 {v(X+2)}, 5, {v(VL)}\nv_lshl_add_u32 {v(X+1)}, {v(X+2)}, 4, {v(X+1)}")
    A(f"s_lshl_b32 s{sT}, s{sW}, 7\ns_add_u32 s{sT}, s{sT}, {YB}\nv_add_u32 {v(VCP)}, s{sT}, {v(X+1)}")
    for i in range(5):
        if i == 4: A(f"s_cmp_ge_u32 s{sW}, 2\ns_cbranch_scc1 L_k3_ffn_y")
        w = GW
        for f in range(6):
            for e in range(2):
                row = 16 * f + 8 * e
                base, ro = (VWD, row) if row < 48 else (VWD + 1, row - 48)
                A(f"ds_read_b64_tr_b16 {v(w+4*f+2*e,2)}, {v(base)} offset:{ro*1152 + 256*i}")
        A("s_waitcnt lgkmcnt(0)")
        acc = v(16 * i, 16)
        for f in range(6): A(f"{MFMA} {acc}, {v(w+4*f,4)}, {v(HF+4*f,4)}, {'0' if f == 0 else acc}")
        A(f"s_nop 7\ns_nop 7\ns_mov_b64 exec, s[{sMask}:{sMask+1}]")
        for j in range(4): A(f"ds_write_b128 {v(VCP)}, {v(16*i+4*j,4)} offset:{512*i + 32*j}")
        A("s_mov_b64 exec, -1")
    A.label("L_k3_ffn_y")
    A("s_waitcnt lgkmcnt(0)\ns_barrier")
    ST.at(3)
    A(f"v_lshlrev_b32 {v(X)}, 2, {v(VL)}\ns_mul_i32 s{sT}, s{sW}, 4608\nv_add_u32 {v(X)}, s{sT}, {v(X)}\nv_add_u32 {v(X+1)}, {YB}, {v(X)}")
    for i in range(18): A(f"ds_read_b32 {v(i)}, {v(X+1)} offset:{256*i}")
    A(f"s_mov_b32 s{sT}, {hex(WS_Y)}\ns_add_u32 s{sT+1}, s{sT}, 4096\ns_waitcnt lgkmcnt(0)")
    for i in range(18):
        A(f"buffer_atomic_add_f32 {v(i)}, {v(X)}, {WS}, s{sT + (i//16)} offen offset:{256*(i%16)} sc0")
    A("s_waitcnt vmcnt(0)\ns_barrier")
    A(f"s_cmp_lg_u32 s{sW}, 0\ns_cbranch_scc1 L_k3_ffn_end")
    A(f"v_mov_b32 {v(0)}, 1\nv_mov_b32 {v(1)}, 0\ns_mov_b64 exec, 1")
    A(f"buffer_atomic_add {v(0)}, {v(1)}, s[{S_DBG}:{S_DBG+3}], 0 offen sc1")
    A("s_mov_b64 exec, -1")
    A.label("L_k3_ffn_end")
    fin()
    A.label("L_k3_done")
    A("s_endpgm")
    return name, A.text(), kernel_desc(name, 256 + 216, 102, accum=256), f"grid=({192+NFFN},1,1) block=(256,1,1) lds=163840"

def assemble(kernels, path):
    hdr = ""; body = ""; desc = ""
    for name, text, d, launch in kernels:
        hdr += f"; @launch kernel={name} {launch}\n"
        text, nfix = hazard.fix_text(text)
        print(name, 'auto nops:', nfix)
        body += text; desc += d
    out = hdr + '.amdgcn_target "amdgcn-amd-amdhsa--gfx950"\n.text\n' + body + '.section .rodata,"a"\n' + desc
    open(path, 'w').write(out)
    return out

if __name__ == '__main__':
    if 'stamp' in sys.argv: STAMP = True
    ks = [gen_k1(), gen_k2(), gen_k3()]
    out = assemble(ks, sys.argv[1] if len(sys.argv) > 1 else 'k.s')
    print("hazards:", hazard.check_text(out))
```

```python
import sys, math, struct
import hazard
from asmlib import *

NAME = "parallel_sum__compressed_kv_cla__moe_arch_mod__prompt"
KA_X, KA_C, KA_WQ, KA_WUK, KA_WUV, KA_WO, KA_BX, KA_WR, KA_WG, KA_WU, KA_WD, KA_OUT, KA_DBG, KA_WS = [8 * i for i in range(14)]
WS_XNF = 0x0
WS_XNR = 0x240000
WS_R   = 0x480000
WS_SEL = 0x482000
WS_Y   = 0x483000
WS_KV  = 0x1000000
WS_CTX = 0x3000000
WS_WOF = 0x4000000
WS_BYTES = 0x10000000
OOB = 0x40000000

def f32bits(x):
    return struct.unpack('<I', struct.pack('<f', x))[0]

MFMA = "v_mfma_f32_32x32x16_bf16"

class VM:
    def __init__(self, A): self.A = A; self.ops = []
    def issue(self, text, tag=None):
        self.A(text); self.ops.append(tag)
    def wait(self, tag):
        idx = max(i for i, t in enumerate(self.ops) if t == tag)
        n = len(self.ops) - 1 - idx
        self.A(f"s_waitcnt vmcnt({min(n, 63)})")


_ST = [False]
_LITE = [False]
def LITE(): return _LITE[0]
def STAMP(): return _ST[0]
import os
def TM(): return 's_memrealtime' if os.environ.get('STRT') else 's_memtime'
class Stamps:
    def __init__(self, A, base=60): self.A = A; self.base = base; self.n = 0
    def mark(self):
        if not STAMP(): return
        self.A(f"{TM()} s[{self.base+2*self.n}:{self.base+2*self.n+1}]"); self.n += 1
    def at(self, i):
        if not STAMP(): return
        self.A(f"{TM()} s[{self.base+2*i}:{self.base+2*i+1}]"); self.n = max(self.n, i + 1)
    def dump(self, srd_ws, sWave, vtmp, stmp, region, nw):
        if not STAMP(): return
        A = self.A
        A(f"s_memrealtime s[{self.base+2*self.n}:{self.base+2*self.n+1}]")
        A("s_waitcnt lgkmcnt(0)")
        A(f"s_mul_i32 s{stmp}, s2, {nw}\ns_add_u32 s{stmp}, s{stmp}, s{sWave}\ns_lshl_b32 s{stmp}, s{stmp}, 7\ns_add_u32 s{stmp}, s{stmp}, {hex(region)}")
        A(f"v_mov_b32 {v(vtmp+1)}, 0")
        for i in range(self.n + 1):
            A(f"v_mov_b32 {v(vtmp)}, s{self.base+2*i}")
            A(f"buffer_store_dword {v(vtmp)}, {v(vtmp+1)}, s[{srd_ws}:{srd_ws+3}], s{stmp} offen offset:{4*i}")
            A("s_nop 1")

def dpp_sum32(A, x, t):
    for ctl in ("quad_perm:[1,0,3,2]", "quad_perm:[2,3,0,1]", "row_half_mirror", "row_mirror"):
        A("s_nop 1")
        A(f"v_add_f32_dpp {v(x)}, {v(x)}, {v(x)} {ctl} row_mask:0xf bank_mask:0xf")
    A(f"v_mov_b32 {v(t)}, {v(x)}")
    A("s_nop 1")
    A(f"v_permlane16_swap_b32 {v(x)}, {v(t)}")
    A("s_nop 0")
    A(f"v_add_f32 {v(x)}, {v(x)}, {v(t)}")


MFMA16 = "v_mfma_f32_16x16x32_bf16"

def dpp_sum64(A, x, t):
    dpp_sum32(A, x, t)
    A(f"v_mov_b32 {v(t)}, {v(x)}")
    A("s_nop 1")
    A(f"v_permlane32_swap_b32 {v(x)}, {v(t)}")
    A("s_nop 0")
    A(f"v_add_f32 {v(x)}, {v(x)}, {v(t)}")

class LG:
    def __init__(self): self.ops = []; self.done = 0
    def issue(self, tag): self.ops.append(tag)
    def clear(self): self.done = len(self.ops)
    def wait(self, A, tags):
        idx = -1
        for t in tags:
            c = [i for i, x in enumerate(self.ops) if x == t]
            if c: idx = max(idx, c[-1])
        if idx < self.done: return
        n = len(self.ops) - 1 - idx
        if n > 15: n = 15
        A(f"s_waitcnt lgkmcnt({n})")
        self.done = len(self.ops) - n
```

```python
from common import *
import os
OPT = set(os.environ.get('K1OPT', '').split(','))

def gen_k1(k2_code=None):
    A = Asm(); name = "kvproj_kernel"
    kernel_begin(A, name)
    def acc(t): return v(4 * t, 4) if t < 48 else a(4 * (t - 48), 4)
    CF = 64; WF = [96, 128]
    VCA = 192; VWR = 194; VDC = 202; VDW = 206; VPF = 210; VT1 = 211; L = 212; VJ = 213; T = 214; OUTR = 224
    X = 0; WR = 9; F = 18; D = 36; SUM = 54; TMP = 55; MEAN = 56; VAR = 57; RS = 58; SD = 59; VLO = 60; VJ32 = 61; G0 = 64; NLN = 76
    S_C = 8; S_W = 12; S_X = 16; S_WS = 20; S_WR = 24; S_PF = 52
    sW = 28; sH = 29; sTT = 30; sSC = 31; sSW = 32; sM = 33; sCnt = 35; sT = 36; sPF = 39; sPFs = 56; sHH = 57
    sTW = 84; sTC = 85; sG = 86
    ST = Stamps(A)
    A(f"s_cmp_ge_u32 s2, 256\ns_cbranch_scc1 L_k1_done")
    A(f"s_load_dwordx4 s[40:43], s[0:1], {KA_X}")
    A(f"s_load_dwordx4 s[44:47], s[0:1], {KA_WUK}")
    A(f"s_load_dwordx2 s[48:49], s[0:1], {KA_WR}")
    A(f"s_load_dwordx2 s[50:51], s[0:1], {KA_WS}")
    A(f"s_load_dwordx2 s[4:5], s[0:1], {KA_WQ}")
    A(f"s_getpc_b64 s[6:7]\nv_lshlrev_b32 {v(T)}, 7, v0\nv_cmp_gt_u32 vcc, (L_k1_done-kvproj_kernel+127)/128, v0\ns_and_saveexec_b64 s[90:91], vcc\ns_cbranch_execz L_k1_nocode")
    A(f"global_load_dword {v(VJ)}, {v(T)}, s[6:7]")
    A.label("L_k1_nocode")
    A("s_mov_b64 exec, s[90:91]")
    ST.mark()
    if STAMP(): A("s_memrealtime s[58:59]")
    A(f"v_and_b32 {v(L)}, 63, v0")
    A(f"v_lshrrev_b32 {v(T)}, 6, v0\ns_nop 0\nv_readfirstlane_b32 s{sW}, {v(T)}")
    A(f"s_and_b32 s{sH}, s2, 7\ns_lshl_b32 s{sH}, s{sH}, 2\ns_lshr_b32 s{sHH}, s2, 3\ns_and_b32 s{sHH}, s{sHH}, 3\ns_add_u32 s{sH}, s{sH}, s{sHH}")
    A(f"s_lshr_b32 s{sTT}, s2, 5")
    A(f"v_lshrrev_b32 {v(T)}, 5, {v(L)}\nv_mul_u32_u24 {v(VLO)}, 1152, {v(T)}\nv_and_b32 {v(VJ32)}, 31, {v(L)}\nv_lshlrev_b32 {v(VJ32)}, 2, {v(VJ32)}\nv_add_u32 {v(VLO)}, {v(VLO)}, {v(VJ32)}")
    A(f"s_lshl_b32 s{sT}, s2, 2\ns_add_u32 s{sT}, s{sT}, s{sW}\ns_mul_i32 s{sT+1}, s{sT}, 2304")
    A(f"v_lshlrev_b32 {v(VT1)}, 7, {v(L)}\ns_lshl_b32 s{sTC}, s2, 13\ns_lshr_b32 s{sTW}, s2, 1\ns_lshl_b32 s{sTW}, s{sTW}, 13")
    A(f"s_lshr_b32 s{sT+2}, s{sW}, 1\ns_xor_b32 s{sT+2}, s{sT+2}, s2\ns_and_b32 s{sT+2}, s{sT+2}, 1\ns_cselect_b32 s{sTW}, {hex(OOB)}, s{sTW}")
    A(f"s_mov_b32 s{S_C+2}, {hex(2048*512*2)}\ns_mov_b32 s{S_C+3}, 0x00020000\ns_mov_b32 s{S_W+2}, {hex(512*4096*2)}\ns_mov_b32 s{S_W+3}, 0x00020000")
    A(f"s_mov_b32 s{S_X+2}, {hex(2048*576*2)}\ns_mov_b32 s{S_X+3}, 0x00020000\ns_mov_b32 s{S_WR+2}, 1152\ns_mov_b32 s{S_WR+3}, 0x00020000")
    A(f"s_cmp_lt_u32 s{sW}, 2")
    A("s_waitcnt lgkmcnt(0)")
    A(f"s_cselect_b32 s{S_W}, s44, s46\ns_cselect_b32 s{S_W+1}, s45, s47\ns_mov_b32 s{S_C}, s42\ns_mov_b32 s{S_C+1}, s43\ns_mov_b32 s{S_X}, s40\ns_mov_b32 s{S_X+1}, s41\ns_mov_b32 s{S_WR}, s48\ns_mov_b32 s{S_WR+1}, s49")
    A(f"s_and_b32 s{sT+2}, s{sW}, 1\ns_cbranch_scc0 L_k1_t1")
    A(f"buffer_load_dword {v(VJ)}, {v(VT1)}, s[{S_W}:{S_W+3}], s{sTW} offen")
    A.label("L_k1_t1")
    A(f"s_cmp_eq_u32 s{sW}, 0\ns_cbranch_scc0 L_k1_t2")
    A(f"buffer_load_dword {v(VJ)}, {v(VT1)}, s[{S_C}:{S_C+3}], s{sTC} offen")
    A.label("L_k1_t2")
    for i in range(9): A(f"buffer_load_dword {v(X+i)}, {v(VLO)}, s[{S_X}:{S_X+3}], s{sT+1} offen offset:{128*i}")
    for i in range(9): A(f"buffer_load_dword {v(WR+i)}, {v(VJ32)}, s[{S_WR}:{S_WR+3}], 0 offen offset:{128*i}")
    srd(A, S_WS, 50, WS_BYTES)
    WS = f"s[{S_WS}:{S_WS+3}]"
    A(f"v_lshrrev_b32 {v(T+3)}, 4, {v(L)}\nv_lshlrev_b32 {v(T+1)}, 1, {v(T+3)}\nv_and_b32 {v(T+2)}, 15, {v(L)}\nv_xor_b32 {v(T+1)}, {v(T+1)}, {v(T+2)}")
    A(f"s_and_b32 s{sT+2}, s{sW}, 1\ns_lshl_b32 s{sT+2}, s{sT+2}, 4\nv_add_u32 {v(T)}, s{sT+2}, {v(T+3)}\nv_lshlrev_b32 {v(T)}, 13, {v(T)}")
    for j in range(4):
        A(f"v_xor_b32 {v(T+2)}, {8*(j>>1)}, {v(T+1)}\nv_lshl_add_u32 {v(T+2)}, {v(T+2)}, 4, {v(T)}\nv_add_u32 {v(VDW+j)}, {j*32768 - j*1024}, {v(T+2)}")
    A(f"v_and_b32 {v(T+1)}, 1, {v(T+3)}\nv_lshlrev_b32 {v(T+1)}, 1, {v(T+1)}\nv_lshrrev_b32 {v(T+2)}, 1, {v(T+3)}\nv_mul_u32_u24 {v(T+2)}, 3, {v(T+2)}\nv_xor_b32 {v(T+1)}, {v(T+1)}, {v(T+2)}")
    A(f"v_and_b32 {v(T+2)}, 3, {v(L)}\nv_xor_b32 {v(T+1)}, {v(T+1)}, {v(T+2)}")
    A(f"v_lshrrev_b32 {v(T)}, 2, {v(L)}\ns_lshl_b32 s{sT+2}, s{sW}, 6\nv_add_u32 {v(T)}, s{sT+2}, {v(T)}\nv_lshlrev_b32 {v(T)}, 10, {v(T)}\nv_lshl_add_u32 {v(VDC)}, {v(T+1)}, 4, {v(T)}")
    for j in range(1, 4): A(f"v_add_u32 {v(VDC+j)}, {j*16384 - j*1024}, {v(VDC)}")
    A(f"s_lshl_b32 s{sSC}, s{sTT}, 18\ns_lshl_b32 s{sSW}, s{sH}, 8\ns_lshl_b32 s{sM}, s{sW}, 13")
    dc = [f"buffer_load_dwordx4 {v(VDC+j)}, s[{S_C}:{S_C+3}], s{sSC} offen offset:{1024*j} lds" for j in range(4)]
    dw = [f"buffer_load_dwordx4 {v(VDW+j)}, s[{S_W}:{S_W+3}], s{sSW} offen offset:{1024*j} lds" for j in range(4)]
    def m0c(slot): return f"s_add_u32 m0, s{sM}, {32768*slot}"
    def m0w(slot): return f"s_add_u32 m0, s{sM}, {32768*slot+4096}"
    adv = [f"s_add_u32 s{sSC}, s{sSC}, 64", f"s_add_u32 s{sSW}, s{sSW}, {32*8192}"]
    def chunk_dma(slot):
        A(m0w(slot))
        for x in dw: A(x)
        A(m0c(slot))
        for x in dc: A(x)
        for x in adv: A(x)
    A(f"v_and_b32 {v(T)}, 15, {v(L)}")
    A(f"v_lshrrev_b32 {v(T+1)}, 3, {v(T)}\nv_lshl_add_u32 {v(T+1)}, {v(T+1)}, 3, {v(T)}")
    A(f"s_cmp_lt_u32 s{sW}, 2\ns_cselect_b64 s[6:7], -1, 0")
    A(f"v_cndmask_b32 {v(T+1)}, {v(T+1)}, {v(T)}, s[6:7]")
    A(f"v_bfe_u32 {v(T+2)}, {v(T+1)}, 2, 1\nv_lshlrev_b32 {v(T+2)}, 1, {v(T+2)}\nv_bfe_u32 {v(T+4)}, {v(T+1)}, 3, 1\nv_mul_u32_u24 {v(T+4)}, 3, {v(T+4)}\nv_xor_b32 {v(T+2)}, {v(T+2)}, {v(T+4)}")
    A(f"v_xor_b32 {v(T+2)}, {v(T+2)}, {v(T+3)}\nv_lshlrev_b32 {v(T+1)}, 6, {v(T+1)}\nv_lshl_add_u32 {v(T+1)}, {v(T+2)}, 4, {v(T+1)}")
    A(f"s_and_b32 s{sT+2}, s{sW}, 1\ns_lshl_b32 s{sT+2}, s{sT+2}, 14\nv_add_u32 {v(VCA)}, s{sT+2}, {v(T+1)}\nv_xor_b32 {v(VCA+1)}, 48, {v(VCA)}")
    A(f"v_bfe_u32 {v(T)}, {v(L)}, 2, 2\nv_bfe_u32 {v(T+2)}, {v(L)}, 4, 1\nv_lshl_add_u32 {v(T+1)}, {v(T+2)}, 3, {v(T)}\nv_lshlrev_b32 {v(T+1)}, 8, {v(T+1)}\nv_lshl_or_b32 {v(T)}, {v(T+2)}, 2, {v(T)}")
    A(f"v_lshrrev_b32 {v(T+2)}, 5, {v(L)}\nv_lshl_add_u32 {v(T+1)}, {v(T+2)}, 13, {v(T+1)}\nv_and_b32 {v(T+2)}, 3, {v(L)}\nv_lshl_add_u32 {v(T+1)}, {v(T+2)}, 3, {v(T+1)}")
    A(f"s_and_b32 s{sT+2}, s{sW}, 2\ns_lshl_b32 s{sT+2}, s{sT+2}, 13\ns_add_u32 s{sT+2}, s{sT+2}, 4096\nv_add_u32 {v(T+1)}, s{sT+2}, {v(T+1)}")
    for nb in range(8):
        A(f"v_xor_b32 {v(T+2)}, {nb}, {v(T)}\nv_lshl_add_u32 {v(VWR+nb)}, {v(T+2)}, 5, {v(T+1)}")
    S_P2 = 92; sP2s = 97; VP2 = 223
    A(f"s_cmp_eq_u32 s{sW}, 0\ns_cbranch_scc0 L_k1_pf2")
    A(f"v_lshrrev_b32 {v(T)}, 1, {v(L)}\nv_lshlrev_b32 {v(T)}, 13, {v(T)}\nv_and_b32 {v(T+1)}, 1, {v(L)}\nv_lshl_add_u32 {v(VP2)}, {v(T+1)}, 7, {v(T)}")
    A(f"s_mul_i32 s{sT+2}, s{sTT}, {72*8192}\ns_add_u32 s{sT+2}, s{sT+2}, s{sSW}\ns_add_u32 s{S_P2}, s4, s{sT+2}\ns_addc_u32 s{S_P2+1}, s5, 0")
    A(f"s_mov_b32 s{S_P2+2}, {72*8192}\ns_mov_b32 s{sP2s}, {32*8192}\ns_branch L_k1_pf4")
    A.label("L_k1_pf2")
    A(f"s_lshr_b32 s{sT+2}, s2, 3\ns_mul_i32 s{sT+2}, s{sT+2}, 73728\ns_add_u32 s{S_P2}, s50, s{sT+2}\ns_addc_u32 s{S_P2+1}, s51, 0\ns_mov_b32 s{S_P2+2}, 73728")
    A(f"s_sub_u32 s{sT+2}, s{sW}, 1\ns_lshl_b32 s{sT+2}, s{sT+2}, 13\nv_add_u32 {v(VP2)}, s{sT+2}, {v(VT1)}\ns_mov_b32 s{sP2s}, 24576")
    A.label("L_k1_pf4")
    A(f"s_mov_b32 s{S_P2+3}, 0x00020000")
    if 'nopf' in OPT: A(f"s_mov_b32 s{S_P2+2}, 0")
    A(f"s_add_u32 s{sPF}, s{sTW}, 0x100000\ns_and_b32 s{sT+2}, s{sW}, 1\ns_cselect_b32 s{sPF}, s{sPF}, {hex(OOB)}")
    for i in range(NLN, 192): A(f"v_mov_b32 {v(i)}, 0")
    for i in range(64): A(f"v_accvgpr_write_b32 {a(i)}, 0")
    ST.mark()
    A("s_waitcnt vmcnt(0)\ns_barrier")
    ST.mark()
    chunk_dma(0)
    RR = SUM
    for i in range(9): A(f"v_lshlrev_b32 {v(F+2*i)}, 16, {v(X+i)}\nv_and_b32 {v(F+2*i+1)}, 0xffff0000, {v(X+i)}")
    A(f"v_add_f32 {v(SUM)}, {v(F)}, {v(F+1)}\nv_add_f32 {v(TMP)}, {v(F+2)}, {v(F+3)}")
    for i in range(4, 18, 2): A(f"v_add_f32 {v(SUM)}, {v(SUM)}, {v(F+i)}\nv_add_f32 {v(TMP)}, {v(TMP)}, {v(F+i+1)}")
    A(f"v_add_f32 {v(SUM)}, {v(SUM)}, {v(TMP)}")
    dpp_sum32(A, SUM, TMP)
    A(f"v_mul_f32 {v(MEAN)}, {hex(f32bits(1.0/576))}, {v(SUM)}")
    for i in range(18): A(f"v_sub_f32 {v(D+i)}, {v(F+i)}, {v(MEAN)}")
    A(f"v_mul_f32 {v(VAR)}, {v(D)}, {v(D)}\nv_mul_f32 {v(TMP)}, {v(D+1)}, {v(D+1)}")
    for i in range(2, 18, 2): A(f"v_fmac_f32 {v(VAR)}, {v(D+i)}, {v(D+i)}\nv_fmac_f32 {v(TMP)}, {v(D+i+1)}, {v(D+i+1)}")
    A(f"v_add_f32 {v(VAR)}, {v(VAR)}, {v(TMP)}")
    dpp_sum32(A, VAR, TMP)
    chunk_dma(1)
    A(f"v_mul_f32 {v(VAR)}, {hex(f32bits(1.0/576))}, {v(VAR)}")
    A(f"v_cvt_pk_bf16_f32 {v(TMP)}, {v(MEAN)}, {v(VAR)}")
    A(f"v_lshlrev_b32 {v(MEAN)}, 16, {v(TMP)}\nv_and_b32 {v(VAR)}, 0xffff0000, {v(TMP)}")
    A(f"v_add_f32 {v(VAR)}, {hex(f32bits(1e-5))}, {v(VAR)}")
    A(f"v_cvt_pk_bf16_f32 {v(TMP)}, {v(VAR)}, {v(VAR)}\nv_and_b32 {v(VAR)}, 0xffff0000, {v(TMP)}")
    A(f"v_sqrt_f32 {v(SD)}, {v(VAR)}")
    for i in range(18): A(f"v_sub_f32 {v(D+i)}, {v(F+i)}, {v(MEAN)}")
    A(f"v_cvt_pk_bf16_f32 {v(TMP)}, {v(SD)}, {v(SD)}\nv_and_b32 {v(SD)}, 0xffff0000, {v(TMP)}")
    A(f"v_rcp_f32 {v(RS)}, {v(SD)}")
    for i in range(9): A(f"v_cvt_pk_bf16_f32 {v(X+i)}, {v(D+2*i)}, {v(D+2*i+1)}")
    for i in range(9): A(f"v_lshlrev_b32 {v(D+2*i)}, 16, {v(X+i)}\nv_and_b32 {v(D+2*i+1)}, 0xffff0000, {v(X+i)}")
    for i in range(18): A(f"v_mul_f32 {v(F+i)}, {v(D+i)}, {v(RS)}")
    for i in range(18): A(f"v_fma_f32 {v(D+i)}, -{v(F+i)}, {v(SD)}, {v(D+i)}")
    for i in range(18): A(f"v_fmac_f32 {v(F+i)}, {v(D+i)}, {v(RS)}")
    for i in range(9): A(f"v_cvt_pk_bf16_f32 {v(X+i)}, {v(F+2*i)}, {v(F+2*i+1)}")
    A(f"s_mul_i32 s{sT+1}, s{sW}, 2304\ns_add_u32 s{sT+1}, s{sT+1}, 131072\nv_add_u32 {v(T)}, s{sT+1}, {v(VLO)}")
    for i in range(9): A(f"ds_write_b32 {v(T)}, {v(X+i)} offset:{128*i}")
    for i in range(9):
        A(f"v_lshlrev_b32 {v(F+2*i)}, 16, {v(X+i)}\nv_and_b32 {v(F+2*i+1)}, 0xffff0000, {v(X+i)}")
        A(f"v_lshlrev_b32 {v(D+2*i)}, 16, {v(WR+i)}\nv_and_b32 {v(D+2*i+1)}, 0xffff0000, {v(WR+i)}")
    A(f"v_mul_f32 {v(RR)}, {v(F)}, {v(D)}\nv_mul_f32 {v(TMP)}, {v(F+1)}, {v(D+1)}")
    for i in range(2, 18, 2): A(f"v_fmac_f32 {v(RR)}, {v(F+i)}, {v(D+i)}\nv_fmac_f32 {v(TMP)}, {v(F+i+1)}, {v(D+i+1)}")
    A(f"v_add_f32 {v(RR)}, {v(RR)}, {v(TMP)}")
    dpp_sum32(A, RR, TMP)
    A(f"v_cvt_pk_bf16_f32 {v(TMP)}, {v(RR)}, {v(RR)}\nv_and_b32 {v(T+5)}, 0xffff0000, {v(TMP)}")
    chunk_dma(2)
    A(f"buffer_load_dword {v(VJ)}, {v(VT1)}, s[{S_W}:{S_W+3}], s{sPF} offen\ns_add_u32 s{sPF}, s{sPF}, 0x100000")
    A(f"v_lshrrev_b32 {v(T)}, 5, {v(L)}\nv_lshlrev_b32 {v(T)}, 2, {v(T)}\ns_lshl_b32 s{sT}, s{sT}, 3\ns_add_u32 s{sT}, s{sT}, {hex(WS_R)}\ns_mov_b32 exec_lo, 1\ns_mov_b32 exec_hi, 1")
    A(f"buffer_store_dword {v(T+5)}, {v(T)}, {WS}, s{sT} offen\ns_mov_b64 exec, -1")
    for i in range(NLN): A(f"v_mov_b32 {v(i)}, 0")
    A(f"s_lshl_b32 s{sT}, s{sW}, 3\nv_lshrrev_b32 {v(T)}, 3, {v(L)}\nv_add_u32 {v(T)}, s{sT}, {v(T)}\nv_and_b32 {v(T+1)}, 7, {v(L)}")
    A(f"v_mul_u32_u24 {v(T+2)}, 1152, {v(T+1)}\nv_lshl_add_u32 {v(T+2)}, {v(T)}, 4, {v(T+2)}\nv_add_u32 {v(T+2)}, 131072, {v(T+2)}")
    A(f"v_lshlrev_b32 {v(T)}, 9, {v(T)}\nv_lshl_add_u32 {v(T)}, {v(T+1)}, 4, {v(T)}")
    A(f"s_lshr_b32 s{sG}, s2, 2\ns_mul_i32 s{sG}, s{sG}, 36864\ns_and_b32 s{sT}, s2, 3\ns_lshl_b32 s{sT}, s{sT}, 7\ns_add_u32 s{sG}, s{sG}, s{sT}")
    A(f"s_add_u32 s{sG+1}, s{sG}, 16384\ns_add_u32 s{sG+2}, s{sG}, 32768\ns_cmp_eq_u32 s{sW}, 0\ns_cselect_b32 s{sG+2}, s{sG+2}, {hex(OOB)}")
    ST.mark()
    A(f"s_waitcnt vmcnt(18) lgkmcnt(0)\ns_barrier")
    ST.mark()
    for q in range(3): A(f"ds_read_b128 {v(OUTR+4*q,4)}, {v(T+2)} offset:{512*q}")
    def cread(kind, tb, slot):
        so = (slot & 1) * 32768
        if kind == "k": return f"ds_read_b128 {a(CF+4*tb,4)}, {v(VCA)} offset:{so + (tb>>2)*8192 + (tb&3)*1024}"
        return f"ds_read_b128 {a(CF+4*tb,4)}, {v(VCA+(tb&1))} offset:{so + (tb>>2)*8192 + ((tb>>1)&1)*2048 + (tb&1)*512}"
    def wread(fs, n, slot):
        nb, e = n // 2, n % 2
        return f"ds_read_b64_tr_b16 {a(WF[fs]+4*nb+2*e,2)}, {v(VWR+nb)} offset:{(slot&1)*32768 + 1024*e}"
    A(f"s_mov_b32 s{sCnt}, 0")
    A(f"s_cmp_ge_u32 s{sW}, 2\ns_cbranch_scc1 L_k1_v")
    for kind in ("k", "v"):
        if kind == "v": A.label("L_k1_v")
        for n in range(16): A(wread(0, n, 0))
        for tb in range(7): A(cread(kind, tb, 0))
        A("s_waitcnt lgkmcnt(0)")
        for q in range(3): A(f"buffer_store_dwordx4 {v(OUTR+4*q,4)}, {v(T)}, {WS}, s{sG+q} offen sc1")
        def body(A, lg):
            for u in range(4):
                fs = u & 1; nx = (u + 1) & 3
                fill = [[] for _ in range(64)]
                def put(g, x, tag=None): fill[g].append((x, tag))
                put(0, cread(kind, 7, u), ('c', 7))
                if u == 1:
                    put(0, f"s_cmp_lt_u32 s{sCnt}, 3"); put(1, f"s_cselect_b32 s{sSC}, s{sSC}, {hex(OOB)}"); put(1, f"s_cselect_b32 s{sSW}, s{sSW}, {hex(OOB)}")
                BAR = 10
                g0 = BAR
                regs = ([VCA] if kind == "k" else [VCA, VCA + 1]) + [VWR + i for i in range(8)]
                if u & 1:
                    for i, r in enumerate(regs): put(BAR + i // 2, f"v_xor_b32 {v(r)}, 0x10000, {v(r)}")
                    g0 = BAR + 5
                put(g0, cread(kind, 0, nx), ('c', 0))
                for n in range(16): put(g0 + 1 + 2 * n, wread(1 - fs, n, nx), ('w', n))
                for tb in range(1, 7): put(max(8 * (tb + 1), g0 + 2) + (0 if (8 * (tb + 1) - g0) % 2 == 0 else 1), cread(kind, tb, nx), ('c', tb))
                ds_ = (u + 3) & 3
                put(2, m0w(ds_))
                used = set(g for g in range(64) if any(x.startswith('ds_') for x, _ in fill[g]))
                dpos = []
                for n in range(8):
                    g = 3 + 7 * n
                    while g in used or g == BAR - 1: g += 1
                    dpos.append(g)
                for n, x in enumerate(dw + dc):
                    if 'nodma' not in OPT: put(dpos[n], x)
                put(dpos[3] + 1, m0c(ds_))
                put(62, adv[0]); put(63, adv[1])
                if u == 2:
                    lab = f"L_k1_x{kind}"
                    put(57, f"s_cmp_lt_u32 s{sPF}, {hex(512*4096*2)}\ns_cbranch_scc0 {lab}\nbuffer_load_dword {v(VJ)}, {v(VT1)}, s[{S_W}:{S_W+3}], s{sPF} offen\ns_add_u32 s{sPF}, s{sPF}, 0x100000\n{lab}:")
                if u >= 1:
                    lab = f"L_k1_y{kind}{u}"
                    put(59, f"s_cmp_eq_u32 s{sCnt}, 3\ns_cbranch_scc0 {lab}\nbuffer_load_dword {v(VJ)}, {v(VP2)}, s[{S_P2}:{S_P2+3}], 0 offen\nv_add_u32 {v(VP2)}, s{sP2s}, {v(VP2)}\n{lab}:")
                if u == 3: put(60, f"s_add_u32 s{sCnt}, s{sCnt}, 1"); put(63, f"s_cmp_lt_u32 s{sCnt}, 4")
                for g in range(64):
                    tb, nb = g // 8, g % 8
                    if nb == 0: lg.wait(A, [('c', tb)] + ([('w', n) for n in range(16)] if tb == 0 else []))
                    if g == BAR:
                        nb4 = sum(1 for d in dpos if d < BAR)
                        A(f"s_waitcnt vmcnt({8+nb4}) lgkmcnt(0)" + ("" if 'nobar' in OPT else "\ns_barrier")); lg.clear()
                    t_ = tb * 8 + nb
                    cf = a(CF + 4 * tb, 4); wf = a(WF[fs] + 4 * nb, 4)
                    if kind == "k": A(f"{MFMA16} {acc(t_)}, {wf}, {cf}, {acc(t_)}")
                    else: A(f"{MFMA16} {acc(t_)}, {cf}, {wf}, {acc(t_)}")
                    for x, tag in sorted(fill[g], key=lambda z: 0 if z[0].startswith(('ds_', 'buffer')) else 1):
                        if 'nolds' in OPT and x.startswith('ds_'): continue
                        if 'notouch' in OPT and x.startswith('buffer_load_dword '): continue
                        A(x)
                        if tag: lg.issue(tag)
        lg = LG(); body(Asm(), lg)
        A(".p2align 6")
        A.label(f"L_k1_loop_{kind}")
        body(A, lg)
        A(f"s_cbranch_scc1 L_k1_loop_{kind}")
        ST.at(5)
        A("s_getpc_b64 s[6:7]")
        A.label(f"L_k1_pc_{kind}")
        A(f"s_add_u32 s6, s6, {k2_code[0]}-L_k1_pc_{kind}\ns_addc_u32 s7, s7, 0\ns_lshl_b32 s{sT}, s{sW}, 13\nv_add_u32 {v(T)}, s{sT}, {v(VT1)}\nv_cmp_gt_u32 vcc, {k2_code[1]}-{k2_code[0]}, {v(T)}")
        A(f"s_and_saveexec_b64 s[90:91], vcc\ns_cbranch_execz L_k1_nc_{kind}\nglobal_load_dword {v(VJ)}, {v(T)}, s[6:7]")
        A.label(f"L_k1_nc_{kind}")
        A("s_mov_b64 exec, s[90:91]")
        A(f"s_lshl_b32 s{sT}, s{sH}, 20\ns_add_u32 s{sT}, s{sT}, {hex(WS_KV)}\ns_lshl_b32 s{sT+1}, s{sTT}, 17\ns_add_u32 s{sT}, s{sT}, s{sT+1}")
        A(f"s_and_b32 s{sT+1}, s{sW}, 1\ns_lshl_b32 s{sT+1}, s{sT+1}, 16\ns_add_u32 s{sT}, s{sT}, s{sT+1}")
        A(f"v_and_b32 {v(T)}, 15, {v(L)}\nv_lshlrev_b32 {v(T)}, 4, {v(T)}\nv_bfe_u32 {v(T+1)}, {v(L)}, 4, 1\nv_lshrrev_b32 {v(T+2)}, 5, {v(L)}")
        if kind == "k":
            A(f"v_lshl_add_u32 {v(T)}, {v(T+1)}, 10, {v(T)}\nv_lshl_add_u32 {v(T)}, {v(T+2)}, 9, {v(T)}\nv_add_u32 {v(T+1)}, 4096, {v(T)}")
        else:
            A(f"s_add_u32 s{sT}, s{sT}, 8192\nv_lshl_add_u32 {v(T)}, {v(T+1)}, 9, {v(T)}\nv_lshl_add_u32 {v(T)}, {v(T+2)}, 12, {v(T)}")
        k = 0
        flags = os.environ.get('K1ST', 'sc0 sc1')
        for kb in range(4):
            if kb == 3:
                for i in range(64): A(f"v_accvgpr_read_b32 {v(i)}, {a(i)}")
            for u in range(8):
                if kind == "k":
                    tb = 2 * kb + (u >> 2); p = u & 3
                    t0 = tb * 8 + 2 * p; t1 = t0 + 1; off = (p & 1) * 2048 + (tb & 1) * 256; va = T + (p >> 1)
                else:
                    nb = u
                    t0 = 2 * kb * 8 + nb; t1 = t0 + 8; off = (nb >> 1) * 1024 + (nb & 1) * 256; va = T
                a0 = 4 * (t0 % 48); a1 = 4 * (t1 % 48)
                o = OUTR + 4 * (k % 8); k += 1
                A(f"v_cvt_pk_bf16_f32 {v(o)}, {v(a0)}, {v(a0+1)}\nv_cvt_pk_bf16_f32 {v(o+1)}, {v(a0+2)}, {v(a0+3)}")
                A(f"v_cvt_pk_bf16_f32 {v(o+2)}, {v(a1)}, {v(a1+1)}\nv_cvt_pk_bf16_f32 {v(o+3)}, {v(a1+2)}, {v(a1+3)}")
                A(f"buffer_store_dwordx4 {v(o,4)}, {v(va)}, {WS}, s{sT} offen offset:{off} {flags}")
            if kb < 3: A(f"s_add_u32 s{sT}, s{sT}, 16384")
        ST.at(6)
        if STAMP():
            A("s_waitcnt vmcnt(0)")
            ST.at(7)
            A("s_waitcnt lgkmcnt(0)\ns_mov_b32 s76, s58")
            ST.n = 9
            ST.dump(S_WS, sW, T, sT, 0x8000000, 4)
        A("s_endpgm")
    A.label("L_k1_done")
    A("s_endpgm")
    return name, A.text(), kernel_desc(name, 256 + 160, 100, accum=256), f"grid=(256,1,1) block=(256,1,1) lds={131072+9216}"
```

```python
from common import *
import os
OPT2 = set(os.environ.get('K2OPT', '').split(','))
def gen_k2(k3_code=None):
    A = Asm(); name = "attn_kernel"
    kernel_begin(A, name)
    O = 0; Q = 64; S = [96, 112]; NEG = 128; DIAG = 144; P = [160, 168]; T = 176; L = [180, 181]; LTOT = 182
    VA = 183; VB = 184; VD = 185; VL = 186; X0 = 187
    Q2 = 192; SL = 224
    VWQ = 232
    VDW = 236
    KF = 0; VF = 32; WF = [0, 16]; XF = 32
    S_WS = 8; S_WQ = 12
    sW = 16; sH = 17; sT1 = 18; sT2 = 19; sSrc = 20; sEnd = 21; sRestart = 22; sThr = 23; sThrLo = 24
    sPhase = 25; sTile = 26; sCnt = 27; sWh = 28; sT = 29
    sX1 = 34; sX2 = 35; sWqo = 36; sFirst = 38
    sRet = 40; sM = 42
    sCtx = 44; sPart = 45; sPF = 46; S_PF = 48; S_P2 = 52; VPF = 240; VP2 = 241; VJ = 242
    ST = Stamps(A)
    A("s_cmp_ge_u32 s2, 256\ns_cbranch_scc1 L_k2_done")
    ST.mark()
    if STAMP(): A("s_memrealtime s[58:59]")
    A(f"s_load_dwordx2 s[4:5], s[0:1], {KA_WS}")
    A(f"s_load_dwordx2 s[6:7], s[0:1], {KA_WQ}")
    A(f"s_load_dwordx2 s[84:85], s[0:1], {KA_WO}\ns_load_dwordx4 s[88:91], s[0:1], {KA_WG}\ns_load_dwordx2 s[92:93], s[0:1], {KA_WD}")
    VTID = 244
    A(f"v_and_b32 {v(VL)}, 63, v0\nv_mov_b32 v{VTID}, v0")
    A(f"v_lshrrev_b32 {v(X0)}, 6, v0\ns_nop 0\nv_readfirstlane_b32 s{sW}, {v(X0)}")
    A(f"s_and_b32 s{sH}, s2, 7\ns_lshl_b32 s{sH}, s{sH}, 2\ns_lshr_b32 s{sT}, s2, 3\ns_and_b32 s{sT}, s{sT}, 3\ns_add_u32 s{sH}, s{sH}, s{sT}")
    A(f"s_lshr_b32 s{sT2}, s2, 5\ns_sub_u32 s{sT1}, 15, s{sT2}")
    A(f"v_lshlrev_b32 {v(VD)}, 4, {v(VL)}\nv_mov_b32 {v(VA)}, {v(VD)}\nv_add_u32 {v(VB)}, 0x10000, {v(VD)}")
    A(f"s_lshl_b32 s{sT}, s{sT1}, 2\ns_add_u32 s{sT}, s{sT}, s{sW}\ns_mul_i32 s{sX1}, s{sT}, 36864")
    A(f"s_lshl_b32 s{sT}, s{sT2}, 2\ns_add_u32 s{sT}, s{sT}, s{sW}\ns_mul_i32 s{sX2}, s{sT}, 36864")
    X = X0
    A(f"v_lshrrev_b32 {v(X)}, 4, {v(VL)}\nv_lshlrev_b32 {v(X+1)}, 2, {v(X)}\nv_and_b32 {v(X+2)}, 15, {v(VL)}\nv_xor_b32 {v(X+1)}, {v(X+1)}, {v(X+2)}\nv_lshlrev_b32 {v(X+1)}, 4, {v(X+1)}")
    A(f"s_lshl_b32 s{sT}, s{sW}, 4\nv_add_u32 {v(X)}, s{sT}, {v(X)}\nv_lshlrev_b32 {v(X)}, 13, {v(X)}\nv_add_u32 {v(X)}, {v(X)}, {v(X+1)}")
    for j in range(4): A(f"v_add_u32 {v(VDW+j)}, {j*32768 - j*1024}, {v(X)}")
    A(f"v_lshrrev_b32 {v(X)}, 5, {v(VL)}\nv_lshlrev_b32 {v(X)}, 3, {v(X)}\nv_bfe_u32 {v(X+1)}, {v(VL)}, 2, 2\nv_add_u32 {v(X)}, {v(X)}, {v(X+1)}\nv_lshlrev_b32 {v(X)}, 8, {v(X)}")
    A(f"v_bfe_u32 {v(X+2)}, {v(VL)}, 4, 1\nv_lshl_add_u32 {v(X)}, {v(X+2)}, 3, {v(X)}")
    A(f"v_and_b32 {v(X+2)}, 1, {v(VL)}\nv_lshl_add_u32 {v(X)}, {v(X+2)}, 4, {v(X)}")
    A(f"v_bfe_u32 {v(X+2)}, {v(VL)}, 1, 1\nv_lshl_add_u32 {v(X)}, {v(X+2)}, 5, {v(X)}")
    for db in range(4):
        A(f"v_xor_b32 {v(X+2)}, {db}, {v(X+1)}\nv_lshlrev_b32 {v(X+2)}, 6, {v(X+2)}\nv_add_u32 {v(VWQ+db)}, {v(X)}, {v(X+2)}\nv_add_u32 {v(VWQ+db)}, {5*16384}, {v(VWQ+db)}")
    A(f"s_lshl_b32 s{sWqo}, s{sH}, 8")
    A(f"s_mov_b32 s{sThr}, {hex(f32bits(2.0**20))}\ns_mov_b32 s{sThrLo}, {hex(f32bits(2.0**-20))}")
    A(f"s_lshl_b32 s{sPart}, s{sW}, 12")
    A(f"s_lshl_b32 s{sSrc}, s{sH}, 20\ns_add_u32 s{sSrc}, s{sSrc}, {hex(WS_KV)}\ns_add_u32 s{sSrc}, s{sSrc}, s{sPart}\ns_mov_b32 s{sRestart}, s{sSrc}")
    A(f"s_add_u32 s{sT}, s{sT1}, 1\ns_lshl_b32 s{sT}, s{sT}, 16\ns_add_u32 s{sEnd}, s{sSrc}, s{sT}")
    A("s_waitcnt lgkmcnt(0)")
    srd(A, S_WS, 4, WS_BYTES)
    srd(A, S_WQ, 6, 576 * 4096 * 2)
    WS = f"s[{S_WS}:{S_WS+3}]"; WQ = f"s[{S_WQ}:{S_WQ+3}]"
    A(f"s_cmp_lg_u32 s2, 0\ns_cbranch_scc1 L_k2_noside")
    A(f"s_cmp_eq_u32 s{sW}, 0\ns_cbranch_scc0 L_k2_side1")
    A(f"s_mov_b32 s{sT}, {hex(WS_R)}")
    for q in range(8):
        if q == 4: A(f"s_add_u32 s{sT}, s{sT}, 4096")
        A(f"buffer_load_dwordx4 {v(4*q,4)}, {v(VD)}, {WS}, s{sT} offen offset:{1024*(q%4)}")
    A("s_branch L_k2_noside")
    A.label("L_k2_side1")
    A(f"s_cmp_eq_u32 s{sW}, 1\ns_cbranch_scc0 L_k2_noside")
    for i in range(4): A(f"v_mov_b32 {v(i)}, 0")
    for q in range(18):
        if q % 4 == 0: A(f"s_mov_b32 s{sT}, {hex(WS_Y + 1024*q)}")
        A(f"buffer_store_dwordx4 {v(0,4)}, {v(VD)}, {WS}, s{sT} offen offset:{1024*(q%4)}")
    A.label("L_k2_noside")
    vm = VM(A)
    def xload(c, j, til):
        r = XF + ((c & 1) * 8 + j * 2 + til) * 4
        sx = sT + til
        return f"buffer_load_dwordx4 {a(r,4)}, {v(VD)}, {WS}, s{sx} offen offset:{1024*j}"
    def xbase(c):
        return [f"s_add_u32 s{sT}, s{sX1}, {4096*c}", f"s_add_u32 s{sT+1}, s{sX2}, {4096*c}"]
    def wdma(c):
        A(f"s_add_u32 m0, s{sPart}, {16384*(5+c%3)}")
        A(f"s_add_u32 s{sT+2}, s{sWqo}, {c*64*8192}")
        for j in range(4):
            vm.issue(f"buffer_load_dwordx4 {v(VDW+j)}, {WQ}, s{sT+2} offen offset:{1024*j} lds", ('W', c))
    for c in range(2):
        for x in xbase(c): A(x)
        for j in range(4):
            for til in range(2): vm.issue(xload(c, j, til), ('X', c, j))
        wdma(c)
    wdma(2)
    A(f"s_mov_b32 s{S_PF+2}, 20736\ns_cmp_eq_u32 s{sW}, 0\ns_cselect_b32 s{S_PF+2}, 0, s{S_PF+2}\ns_cselect_b32 s{S_PF}, s84, s88\ns_cselect_b32 s{S_PF+1}, s85, s89")
    A(f"s_cmp_eq_u32 s{sW}, 2\ns_cselect_b32 s{S_PF}, s90, s{S_PF}\ns_cselect_b32 s{S_PF+1}, s91, s{S_PF+1}\ns_cmp_eq_u32 s{sW}, 3\ns_cselect_b32 s{S_PF}, s92, s{S_PF}\ns_cselect_b32 s{S_PF+1}, s93, s{S_PF+1}")
    A(f"s_mul_i32 s{sPF}, s2, s{S_PF+2}\ns_add_u32 s{S_PF}, s{S_PF}, s{sPF}\ns_addc_u32 s{S_PF+1}, s{S_PF+1}, 0\ns_mov_b32 s{S_PF+3}, 0x00020000\ns_mov_b32 s{sPF}, 0")
    A(f"v_lshlrev_b32 {v(VP2)}, 7, {v(VL)}\nv_cmp_gt_u32 vcc, 16, {v(VL)}\nv_mov_b32 {v(VPF)}, {hex(OOB)}\ns_nop 0\nv_cndmask_b32 {v(VPF)}, {v(VPF)}, {v(VP2)}, vcc")
    if 'nopf' in OPT2: A(f"s_mov_b32 s{S_PF+2}, 0")
    A(f"s_mul_i32 s{sT+2}, s2, 18432\ns_add_u32 s{S_P2}, s84, s{sT+2}\ns_addc_u32 s{S_P2+1}, s85, 0\ns_mov_b32 s{S_P2+2}, 18432\ns_mov_b32 s{S_P2+3}, 0x00020000")
    ST.mark()
    A(f"s_cmp_lg_u32 s2, 0\ns_cbranch_scc1 L_k2_notopk\ns_cmp_lg_u32 s{sW}, 0\ns_cbranch_scc1 L_k2_notopk")
    A("s_waitcnt vmcnt(28)")
    KY = 32; TM = 64
    A(f"v_lshlrev_b32 {v(TM)}, 2, {v(VL)}\nv_sub_u32 {v(TM)}, 2047, {v(TM)}\ns_mov_b32 s{sT}, 0xffff0000")
    for j in range(32):
        q, cc = j // 4, j % 4
        A(f"v_ashrrev_i32 {v(TM+1)}, 31, {v(j)}\nv_or_b32 {v(TM+1)}, 0x80000000, {v(TM+1)}\nv_xor_b32 {v(TM+1)}, {v(TM+1)}, {v(j)}")
        A(f"v_subrev_u32 {v(TM+2)}, {256*q+cc}, {v(TM)}\nv_and_or_b32 {v(KY+j)}, {v(TM+1)}, s{sT}, {v(TM+2)}")
    A(f"s_mov_b32 s{sT+1}, 0\nv_mov_b32 {v(TM+8)}, 0")
    for rnd in range(8):
        for j in range(32): A(f"v_subrev_u32 {v(j)}, s{sT+1}, {v(KY+j)}")
        A(f"v_max3_u32 {v(TM)}, {v(0)}, {v(1)}, {v(2)}")
        for j in range(3, 31, 2): A(f"v_max3_u32 {v(TM)}, {v(TM)}, {v(j)}, {v(j+1)}")
        A(f"v_max_u32 {v(TM)}, {v(TM)}, {v(31)}")
        for ctl in ("quad_perm:[1,0,3,2]", "quad_perm:[2,3,0,1]", "row_half_mirror", "row_mirror"):
            A(f"v_max_u32_dpp {v(TM)}, {v(TM)}, {v(TM)} {ctl} row_mask:0xf bank_mask:0xf")
        A(f"v_mov_b32 {v(TM+1)}, {v(TM)}\nv_permlane16_swap_b32 {v(TM)}, {v(TM+1)}\nv_max_u32 {v(TM)}, {v(TM)}, {v(TM+1)}")
        A(f"v_mov_b32 {v(TM+1)}, {v(TM)}\nv_permlane32_swap_b32 {v(TM)}, {v(TM+1)}\nv_max_u32 {v(TM)}, {v(TM)}, {v(TM+1)}")
        A(f"v_readfirstlane_b32 s{sT+2}, {v(TM)}\ns_nop 3\ns_add_u32 s{sT+1}, s{sT+1}, s{sT+2}")
        A(f"v_writelane_b32 {v(TM+8)}, s{sT+1}, {rnd}")
    K8 = TM + 8
    A(f"v_and_b32 {v(TM)}, 0xffff, {v(K8)}\nv_sub_u32 {v(TM)}, 2047, {v(TM)}")
    A(f"v_ashrrev_i32 {v(TM+1)}, 31, {v(K8)}\nv_not_b32 {v(TM+1)}, {v(TM+1)}\nv_or_b32 {v(TM+1)}, 0x80000000, {v(TM+1)}")
    A(f"v_xor_b32 {v(TM+1)}, {v(TM+1)}, {v(K8)}\nv_and_b32 {v(TM+1)}, 0xffff0000, {v(TM+1)}")
    A(f"v_mul_f32 {v(TM+1)}, {hex(f32bits(-math.log2(math.e)))}, {v(TM+1)}\nv_exp_f32 {v(TM+1)}, {v(TM+1)}\nv_add_f32 {v(TM+1)}, 1.0, {v(TM+1)}\nv_rcp_f32 {v(TM+1)}, {v(TM+1)}")
    A(f"v_cvt_pk_bf16_f32 {v(TM+1)}, {v(TM+1)}, {v(TM+1)}\nv_and_b32 {v(TM+1)}, 0xffff0000, {v(TM+1)}")
    A(f"v_lshlrev_b32 {v(TM+2)}, 2, {v(VL)}\ns_mov_b32 s{sT}, {hex(WS_SEL)}")
    A("s_mov_b64 exec, 0xff")
    A(f"buffer_store_dword {v(TM)}, {v(TM+2)}, {WS}, s{sT} offen")
    A(f"buffer_store_dword {v(TM+1)}, {v(TM+2)}, {WS}, s{sT} offen offset:32")
    A("s_mov_b64 exec, -1")
    A.label("L_k2_notopk")
    def wreads(fs, c, ks):
        return [f"ds_read_b64_tr_b16 {a(WF[fs]+4*db+2*e,2)}, {v(VWQ+db)} offset:{(c%3)*16384 + (16*ks+4*e)*256}" for db in range(4) for e in range(2)]
    def kvdma(lst):
        for j in range(4):
            lst.append(f"buffer_load_dwordx4 {v(VD)}, {WS}, s{sSrc} offen offset:{1024*j} lds")
    vm.wait(('W', 0)); A("s_barrier")
    ST.mark()
    for x in wreads(0, 0, 0): A(x)
    for c in range(9):
        for ks in range(4):
            fs = ks & 1
            fill = [[] for _ in range(8)]
            post = []
            vm.wait(('X', c, ks))
            if ks < 3:
                A("s_waitcnt lgkmcnt(0)")
                rd = wreads(1 - fs, c, ks + 1)
            else:
                A("s_waitcnt lgkmcnt(0)")
                if c < 8: vm.wait(('W', c + 1))
                else: vm.wait(('KV', 0))
                A("s_barrier")
                rd = wreads(1 - fs, c + 1, 0) if c < 8 else [None] * 8
            g = 0
            for db in range(4):
                for til in range(2):
                    acc = v(til * 64 + db * 16, 16)
                    cin = "0" if (c == 0 and ks == 0) else acc
                    xf = a(XF + ((c & 1) * 8 + ks * 2 + til) * 4, 4)
                    A(f"{MFMA} {acc}, {a(WF[fs]+4*db,4)}, {xf}, {cin}")
                    if rd[g]: A(rd[g])
                    if ks == 3 and c <= 4 and g == 1:
                        lab = None
                        if c >= 3:
                            lab = A.newlabel("k2_nov"); A(f"s_cmp_ge_u32 s{sW}, 2\ns_cbranch_scc1 {lab}")
                        A(f"s_add_u32 m0, s{sPart}, {16384*c}\ns_nop 0")
                        l = []; kvdma(l)
                        for x in l:
                            if c < 3: vm.issue(x, ('KV', c))
                            else: A(x)
                        A(f"s_add_u32 s{sSrc}, s{sSrc}, 16384")
                        if lab: A.label(lab)
                    if ks == 3 and g == 4 and c + 3 < 9: wdma(c + 3)
                    if ks == 3 and g == 4 and c == 6:
                        A(f"s_lshl_b32 s{sT+2}, s{sW}, 10\ns_add_u32 m0, s{sT+2}, 131072")
                        for i in range(5):
                            vm.issue(f"buffer_load_dwordx4 {v(VD)}, s[{S_P2}:{S_P2+3}], s{sT+2} offen lds", 'WO')
                            if i < 4: A(f"s_add_u32 s{sT+2}, s{sT+2}, 4096\ns_add_u32 m0, m0, 4096")
                    g += 1
            if c + 2 < 9:
                for x in xbase(c + 2): A(x)
                for til in range(2): vm.issue(xload(c + 2, ks, til), ('X', c + 2, ks))
    ST.mark()
    for g in range(8): A(f"ds_read_b128 {a(KF+4*g,4)}, {v(VA)} offset:{1024*g}")
    A(f"s_cmp_lt_u32 s{sW}, 2\ns_cselect_b32 s{sT}, 5, 3\ns_lshl_b32 s{sT}, s{sT}, 14\ns_add_u32 m0, s{sT}, s{sPart}")
    qs = hex(f32bits(math.log2(math.e) / math.sqrt(128.0)))
    A(f"s_mov_b32 s{sT}, {qs}")
    for til, dst in ((1, Q2), (0, Q)):
        for i in range(64): A(f"v_mul_f32 {v(til*64+i)}, s{sT}, {v(til*64+i)}")
        for i in range(32): A(f"v_cvt_pk_bf16_f32 {v(dst+i)}, {v(til*64+2*i)}, {v(til*64+2*i+1)}")
    A(f"s_mov_b32 s{sPhase}, 0\ns_mov_b32 s{sTile}, s{sT1}")
    ST.mark()
    A.label("L_k2_phase")
    A(f"v_and_b32 {v(X0)}, 31, {v(VL)}\nv_lshrrev_b32 {v(X0+1)}, 5, {v(VL)}\nv_lshlrev_b32 {v(X0+1)}, 2, {v(X0+1)}\nv_sub_u32 {v(X0)}, {v(X0)}, {v(X0+1)}")
    A(f"v_mov_b32 {v(X0+1)}, 0xff800000\nv_mov_b32 {v(LTOT)}, 0")
    for r in range(16):
        cr = 8 * (r // 4) + r % 4
        A(f"v_cmp_gt_i32 vcc, {cr}, {v(X0)}\nv_mov_b32 {v(NEG+r)}, 0\ns_nop 0\nv_cndmask_b32 {v(DIAG+r)}, 0, {v(X0+1)}, vcc")
    A(f"s_cmp_eq_u32 s{sTile}, 0\ns_cselect_b32 s{sWh}, s{sW}, 99")
    A(f"s_sub_u32 s{sCnt}, s{sTile}, 1")
    slow_sites = []
    def step(i, qk=True, sm_prev=True, sm_next=True, pv=True, masked=None, first=False, pv0=False, dma=True, vreload=None, check=True, ltot=True, pf=False):
        u = i & 1
        Sw, Sr, Pr = S[u], S[1 - u], P[u]
        fill = [[] for _ in range(16)]; mem = [[] for _ in range(16)]
        def ex(Sx, e): return f"v_exp_f32 {v(T + e % 4)}, {v(Sx + e)}"
        def ad(Lx, e): return f"v_add_f32 {v(Lx)}, {v(Lx)}, {v(T + e % 4)}"
        def cv(Px, e): return f"v_cvt_pk_bf16_f32 {v(Px + e // 2)}, {v(T + (e - 1) % 4)}, {v(T + e % 4)}"
        if pv:
            vb, vs = (VB, i + 2) if i < 2 else (VA, i - 2)
            for g in range(8): mem[g].append(f"ds_read_b128 {a(VF+4*g,4)}, {v(vb)} offset:{vs*16384 + 8192 + 1024*g}")
        if qk:
            kb, ks_ = (VA, i + 1) if i < 3 else (VB, 0)
            for g in range(8): mem[8 + g].append(f"ds_read_b128 {a(KF+4*g,4)}, {v(kb)} offset:{ks_*16384 + 1024*g}")
        if vreload is not None:
            for g in range(8): mem[8 + g].append(f"ds_read_b128 {a(VF+4*g,4)}, {v(VB)} offset:{vreload*16384 + 8192 + 1024*g}")
        if dma:
            for j, g in enumerate((1, 5, 9, 13)):
                mem[g].append(f"buffer_load_dwordx4 {v(VD)}, {WS}, s{sSrc} offen offset:{1024*j} lds")
            fill[13].append(f"s_add_u32 s{sSrc}, s{sSrc}, 16384")
            fill[14].append(f"s_add_u32 m0, m0, 16384")
            fill[15].append(f"s_and_b32 m0, m0, 0x1ffff")
            if u == 0:
                fill[15].append(f"s_cmp_eq_u32 s{sSrc}, s{sEnd}\ns_cselect_b32 s{sSrc}, s{sRestart}, s{sSrc}")
        if sm_prev:
            for g in range(10): fill[g].insert(0, ex(Sr, g + 6))
            for g in range(11):
                e = g + 5
                fill[g].append(ad(L[1 - u], e))
                if e & 1: fill[g].append(cv(P[1 - u], e))
            if first:
                fill[11].append(f"v_mov_b32 {v(X0)}, {v(L[1-u])}\nv_mov_b32 {v(X0+1)}, {v(L[1-u])}\nv_cmp_lt_f32 s[{sM}:{sM+1}], s{sThr}, {v(L[1-u])}")
                fill[12].append(f"v_permlane32_swap_b32 {v(X0)}, {v(X0+1)}")
                fill[13].append(f"v_add_f32 {v(X0)}, {v(X0)}, {v(X0+1)}")
                fill[14].append(f"v_cmp_gt_f32 vcc, s{sThrLo}, {v(X0)}")
            else:
                fill[11].append(f"v_cmp_lt_f32 vcc, s{sThr}, {v(L[1-u])}")
        if ltot: fill[1].append(f"v_add_f32 {v(LTOT)}, {v(LTOT)}, {v(L[u])}")
        if sm_next:
            for g in range(10, 16): fill[g].insert(0, ex(Sw, g - 10))
            fill[12].append(f"v_add_f32 {v(L[u])}, {v(T)}, {v(T+1)}"); fill[12].append(cv(P[u], 1))
            fill[13].append(ad(L[u], 2)); fill[14].append(ad(L[u], 3)); fill[14].append(cv(P[u], 3)); fill[15].append(ad(L[u], 4))
        if pf and i == 0:
            mem[11].append(f"buffer_load_dword {v(VJ)}, {v(VPF)}, s[{S_PF}:{S_PF+3}], s{sPF} offen")
            fill[11].append(f"s_add_u32 s{sPF}, s{sPF}, 2048")
        if i == 3 and qk: fill[15].append(f"v_swap_b32 {v(VA)}, {v(VB)}")
        for g in range(16):
            has = (qk and g < 8) or (pv and g >= 8)
            if has and g % 4 == 0:
                if g < 8: n = (4 if g == 0 else (4 if pv else 0))
                else: n = (4 if g == 8 else (4 if (qk or vreload is not None) else 0))
                A(f"s_waitcnt lgkmcnt({n})")
            if g < 8 and qk:
                if g == 0 and masked is not None:
                    if i == 3 and masked == sW:
                        A(f"{MFMA} {v(Sw,16)}, {a(KF,4)}, {v(Q,4)}, {v(DIAG,16)}")
                    else:
                        l1 = A.newlabel("k2_m"); l2 = A.newlabel("k2_m")
                        A(f"s_cmp_gt_u32 s{masked}, {i}\ns_cbranch_scc1 {l1}")
                        A(f"{MFMA} {v(Sw,16)}, {a(KF,4)}, {v(Q,4)}, {v(DIAG,16)}\ns_branch {l2}")
                        A.label(l1); A(f"{MFMA} {v(Sw,16)}, {a(KF,4)}, {v(Q,4)}, {v(NEG,16)}"); A.label(l2)
                else:
                    A(f"{MFMA} {v(Sw,16)}, {a(KF+4*g,4)}, {v(Q+4*g,4)}, {v(NEG,16) if g == 0 else v(Sw,16)}")
            if g >= 8 and pv:
                m = (g - 8) // 4; db = g % 4
                cin = "0" if (pv0 and m == 0) else v(O + 16 * db, 16)
                A(f"{MFMA} {v(O+16*db,16)}, {a(VF+4*(g-8),4)}, {v(Pr+4*m,4)}, {cin}")
            for x in mem[g]: A(x)
            for x in fill[g]: A(x)
            if g == 3 and masked is not None and i < 3:
                l1 = A.newlabel("k2_f")
                A(f"s_cmp_eq_u32 s{masked}, {i}\ns_cbranch_scc0 {l1}")
                for r in range(16): A(f"v_mov_b32 {v(DIAG+r)}, 0xff800000")
                A.label(l1)
            if g == 7 and u == 0 and dma:
                A(f"s_waitcnt vmcnt({9 if (pf and i == 2) else 8})\ns_barrier")
        if sm_prev and check:
            site = A.newlabel("k2_site")
            if first:
                A(f"s_or_b64 vcc, vcc, s[{sM}:{sM+1}]\ns_cbranch_scc1 {site}_s")
            else:
                A(f"s_cbranch_vccnz {site}_s")
            A.label(site + "_r")
            slow_sites.append((site, u, first))
    step(0, sm_prev=False, pv=False, masked=sWh, ltot=False)
    step(1, pv=False, masked=sWh, first=True, ltot=False)
    step(2, masked=sWh, pv0=True)
    step(3, masked=sWh)
    A(f"s_cmp_eq_u32 s{sTile}, 0\ns_cbranch_scc1 L_k2_drain")
    A(f"s_cmp_eq_u32 s{sCnt}, 0\ns_cbranch_scc1 L_k2_tail")
    A(".p2align 6")
    A.label("L_k2_loop")
    for i in range(4): step(i, pf=True)
    A(f"s_sub_u32 s{sCnt}, s{sCnt}, 1\ns_cmp_lg_u32 s{sCnt}, 0\ns_cbranch_scc1 L_k2_loop")
    A.label("L_k2_tail")
    for i in range(4): step(i, masked=sW)
    A.label("L_k2_drain")
    A(f"s_cmp_eq_u32 s{sPhase}, 0\ns_cbranch_scc1 L_k2_nol2")
    A(f"s_getpc_b64 s[{sT}:{sT+1}]" if False else "s_getpc_b64 s[94:95]")
    A.label("L_k2_pc")
    A(f"s_add_u32 s94, s94, {k3_code[0]}-L_k2_pc\ns_addc_u32 s95, s95, 0\nv_lshlrev_b32 {v(VJ+1)}, 7, v{VTID}\nv_cmp_gt_u32 vcc, ({k3_code[1]}-{k3_code[0]}+127)/128, v{VTID}")
    A(f"s_and_saveexec_b64 s[96:97], vcc\ns_cbranch_execz L_k2_nol3\nglobal_load_dword {v(VJ)}, {v(VJ+1)}, s[94:95]")
    A.label("L_k2_nol3")
    A("s_mov_b64 exec, s[96:97]")
    A.label("L_k2_nol2")
    step(0, qk=False, sm_next=False, dma=False, vreload=3)
    A(f"v_add_f32 {v(LTOT)}, {v(LTOT)}, {v(L[1])}")
    for g in range(8):
        if g % 4 == 0: A(f"s_waitcnt lgkmcnt({4 if g == 0 else 0})")
        m = g // 4; db = g % 4
        A(f"{MFMA} {v(O+16*db,16)}, {a(VF+4*g,4)}, {v(P[1]+4*m,4)}, {v(O+16*db,16)}")
    A(f"v_mov_b32 {v(X0)}, {v(LTOT)}\nv_permlane32_swap_b32 {v(X0)}, {v(LTOT)}\nv_add_f32 {v(LTOT)}, {v(LTOT)}, {v(X0)}\nv_rcp_f32 {v(LTOT)}, {v(LTOT)}")
    A(f"s_lshl_b32 s{sT}, s{sTile}, 2\ns_add_u32 s{sT}, s{sT}, s{sW}\ns_lshl_b32 s{sT}, s{sT}, 18\ns_lshl_b32 s{sT+1}, s{sH}, 13\ns_add_u32 s{sT}, s{sT}, s{sT+1}\ns_add_u32 s{sT}, s{sT}, {hex(WS_CTX)}")
    A(f"s_add_u32 s{sT+1}, s{sT}, 4096")
    for f in range(8):
        b = O + 8 * f; o = S[0] + 4 * f
        for q in range(8): A(f"v_mul_f32 {v(b+q)}, {v(b+q)}, {v(LTOT)}")
        for q in range(4): A(f"v_cvt_pk_bf16_f32 {v(o+q)}, {v(b+2*q)}, {v(b+2*q+1)}")
        A(f"buffer_store_dwordx4 {v(o,4)}, {v(VD)}, {WS}, s{sT + f//4} offen offset:{1024*(f%4)}")
    A(f"s_cmp_eq_u32 s{sPhase}, 1\ns_cbranch_scc1 L_k2_fin")
    ST.at(5)
    A(f"s_mov_b32 s{sPhase}, 1\ns_mov_b32 s{sTile}, s{sT2}")
    A(f"v_lshrrev_b32 {v(X0)}, 5, {v(VL)}\nv_bfe_u32 {v(X0+1)}, {v(VL)}, 2, 2\nv_lshl_add_u32 {v(X0)}, {v(X0)}, 2, {v(X0+1)}\nv_mul_u32_u24 {v(X0)}, 1152, {v(X0)}")
    A(f"v_bfe_u32 {v(X0+1)}, {v(VL)}, 4, 1\nv_lshl_add_u32 {v(X0)}, {v(X0+1)}, 5, {v(X0)}\nv_and_b32 {v(X0+1)}, 3, {v(VL)}\nv_lshl_add_u32 {v(X0)}, {v(X0+1)}, 3, {v(X0)}")
    A(f"s_lshl_b32 s{sT}, s{sW}, 6\ns_add_u32 s{sT}, s{sT}, 131072\nv_add_u32 {v(X0)}, s{sT}, {v(X0)}")
    for i in range(5):
        for e in range(2): A(f"ds_read_b64_tr_b16 {v(O+4*i+2*e,2)}, {v(X0)} offset:{9216*e + 256*i}")
    A(f"s_mul_i32 s{sT}, s2, 18432\ns_lshl_b32 s{sT+1}, s{sW}, 10\ns_add_u32 s{sT}, s{sT}, s{sT+1}\ns_add_u32 s{sT}, s{sT}, {hex(WS_WOF)}")
    for i in range(32): A(f"v_mov_b32 {v(Q+i)}, {v(Q2+i)}")
    A("s_waitcnt lgkmcnt(0)")
    for i in range(5):
        if i == 4: A(f"s_cmp_lt_u32 s{sW}, 2\ns_cselect_b32 s{sT}, s{sT}, {hex(OOB)}")
        A(f"buffer_store_dwordx4 {v(O+4*i,4)}, {v(VD)}, {WS}, s{sT} offen")
        if i < 4: A(f"s_add_u32 s{sT}, s{sT}, 4096")
    A("s_branch L_k2_phase")
    A.label("L_k2_fin")
    if STAMP():
        ST.at(6)
        A("s_waitcnt vmcnt(0)")
        ST.at(7)
        A("s_waitcnt lgkmcnt(0)\ns_mov_b32 s76, s58")
        ST.n = 9
        ST.dump(S_WS, sW, X0, sT, 0x8100000, 4)
    A.label("L_k2_done")
    A("s_endpgm")
    for site, u, first in slow_sites:
        A.label(site + "_s")
        A(f"s_mov_b64 s[{sFirst}:{sFirst+1}], {-1 if first else 0}")
        A(f"s_call_b64 s[{sRet}:{sRet+1}], L_k2_slow{u}")
        A(f"s_branch {site}_r")
    for u in range(2):
        Sw, Sr = S[u], S[1 - u]
        A.label(f"L_k2_slow{u}")
        A("s_nop 15\ns_nop 15")
        M_ = SL; D_ = SL + 1; F_ = SL + 2
        A(f"v_max3_f32 {v(M_)}, {v(Sr)}, {v(Sr+1)}, {v(Sr+2)}")
        for e in range(3, 15, 2): A(f"v_max3_f32 {v(M_)}, {v(M_)}, {v(Sr+e)}, {v(Sr+e+1)}")
        A(f"v_max_f32 {v(M_)}, {v(M_)}, {v(Sr+15)}")
        A(f"v_mov_b32 {v(D_)}, {v(M_)}\nv_permlane32_swap_b32 {v(M_)}, {v(D_)}\nv_max_f32 {v(M_)}, {v(M_)}, {v(D_)}")
        A(f"v_max_f32 {v(F_)}, 0, {v(M_)}")
        A(f"v_cndmask_b32 {v(D_)}, {v(F_)}, {v(M_)}, s[{sFirst}:{sFirst+1}]")
        A(f"v_exp_f32 {v(F_)}, -{v(F_)}")
        for r in range(16):
            for blk in (NEG, DIAG, Sr, Sw): A(f"v_sub_f32 {v(blk+r)}, {v(blk+r)}, {v(D_)}")
        for r in range(64): A(f"v_mul_f32 {v(O+r)}, {v(O+r)}, {v(F_)}")
        A(f"v_mul_f32 {v(LTOT)}, {v(LTOT)}, {v(F_)}")
        for (Sx, Lx, Px, n) in ((Sr, L[1-u], P[1-u], 16), (Sw, L[u], P[u], 6)):
            for e in range(n):
                A(f"v_exp_f32 {v(T + e % 4)}, {v(Sx+e)}")
                if n == 6 and e == 5: break
                if e == 1: A(f"v_add_f32 {v(Lx)}, {v(T)}, {v(T+1)}")
                elif e > 1: A(f"v_add_f32 {v(Lx)}, {v(Lx)}, {v(T + e % 4)}")
                if e & 1: A(f"v_cvt_pk_bf16_f32 {v(Px + e//2)}, {v(T + (e-1) % 4)}, {v(T + e % 4)}")
        A("s_nop 3")
        A(f"s_setpc_b64 s[{sRet}:{sRet+1}]")
    A.label("L_k2_codeend")
    return name, A.text(), kernel_desc(name, 256 + 96, 100, accum=256), "grid=(256,1,1) block=(256,1,1) lds=151552"
```

```python
from common import *
import os
OPT3 = set(os.environ.get('K3OPT', '').split(','))
NFFN = 48
def gen_k3():
    A = Asm(); name = "oproj_kernel"
    kernel_begin(A, name)
    S_WS = 8; S_B = 12; S_X = 16; S_OUT = 20; S_DBG = 24; S_B2 = 28; S_B3 = 32
    sW = 36; sXc = 37; sJ = 38; sT = 39
    sIdx = 44; sSig = 52
    sC = 84; sWo = 85; sM = 86; sCnt = 87; sRT = 88; sCT = 89; sMask = 90; sPW = 100; sPC = 101
    VL = 250; X = 251
    ST = Stamps(A)
    A(f"s_cmp_ge_u32 s2, {192+NFFN}\ns_cbranch_scc1 L_k3_done")
    A(f"s_load_dwordx2 s[4:5], s[0:1], {KA_WS}")
    ST.mark()
    if STAMP(): A("s_memrealtime s[82:83]")
    A(f"v_and_b32 {v(VL)}, 63, v0")
    A(f"v_lshrrev_b32 {v(X)}, 6, v0\ns_nop 0\nv_readfirstlane_b32 s{sW}, {v(X)}")
    A(f"s_and_b32 s{sXc}, s2, 7\ns_lshr_b32 s{sJ}, s2, 3")
    VR = 244; VCH = 247
    for q in range(3):
        A(f"v_add_u32 {v(X)}, {64*q}, {v(VL)}\nv_mul_u32_u24 {v(VR+q)}, 0xaab, {v(X)}\nv_lshrrev_b32 {v(VR+q)}, 15, {v(VR+q)}")
        A(f"v_mul_u32_u24 {v(X+1)}, 12, {v(VR+q)}\nv_sub_u32 {v(X+1)}, {v(X)}, {v(X+1)}\nv_lshlrev_b32 {v(VCH+q)}, 4, {v(X+1)}")
    WS = f"s[{S_WS}:{S_WS+3}]"
    A(f"s_cmp_lt_u32 s{sJ}, 6\ns_cbranch_scc1 L_k3_ffn")
    A(f"s_sub_u32 s{sJ}, s{sJ}, 6\ns_mul_i32 s{sT}, s{sJ}, 43\ns_lshr_b32 s{sT}, s{sT}, 8")
    A(f"s_mul_i32 s{sT+1}, s{sT}, 6\ns_sub_u32 s{sCT}, s{sJ}, s{sT+1}\ns_lshl_b32 s{sRT}, s{sXc}, 2\ns_add_u32 s{sRT}, s{sRT}, s{sT}")
    ACC = 0; VC0 = 123; VC1 = 124; FR = 0
    NSL = int(os.environ.get('K3NSL', '8'))
    VO = 126; ROW = 128; VWA = 130; VWB = 131; VRA = 132; VN = 133; SEL = 134; SG = 136; VN2 = 138; VCOL = 139
    RX = 164; RN = 176
    A(f"v_lshlrev_b32 {v(VC0)}, 4, {v(VL)}\nv_add_u32 {v(VC1)}, 0x40000, {v(VC0)}")
    A(f"s_mul_i32 s{sM}, s{sW}, 24576")
    A(f"s_lshl_b32 s{sC}, s{sRT}, 19\ns_lshl_b32 s{sT}, s{sW}, 16\ns_add_u32 s{sC}, s{sC}, s{sT}\ns_add_u32 s{sC}, s{sC}, {hex(WS_CTX)}")
    A(f"s_mul_i32 s{sWo}, s{sW}, {64*18432}\ns_mul_i32 s{sT}, s{sCT}, 3072\ns_add_u32 s{sWo}, s{sWo}, s{sT}\ns_add_u32 s{sWo}, s{sWo}, {hex(WS_WOF)}")
    A(f"s_mov_b32 s{S_WS+2}, {hex(WS_BYTES)}\ns_mov_b32 s{S_WS+3}, 0x00020000")
    A("s_waitcnt lgkmcnt(0)")
    A(f"s_mov_b32 s{S_WS}, s4\ns_mov_b32 s{S_WS+1}, s5")
    vm = VM(A)
    def loads(slot):
        b = FR + 20 * slot
        return [f"buffer_load_dwordx4 {a(b+12,4)}, {v(VC0)}, {WS}, s{sC} offen",
                f"buffer_load_dwordx4 {a(b,4)}, {v(VC0)}, {WS}, s{sWo} offen",
                f"buffer_load_dwordx4 {a(b+16,4)}, {v(VC1)}, {WS}, s{sC} offen",
                f"buffer_load_dwordx4 {a(b+4,4)}, {v(VC0)}, {WS}, s{sWo} offen offset:1024",
                f"buffer_load_dwordx4 {a(b+8,4)}, {v(VC0)}, {WS}, s{sWo} offen offset:2048",
                f"s_add_u32 s{sWo}, s{sWo}, 18432", f"s_add_u32 s{sC}, s{sC}, 1024"]
    def emit_loads(slot, tag):
        for x in loads(slot):
            if x.startswith('buffer'): vm.issue(x, tag)
            else: A(x)
    NPRE = 3
    for slot in range(NPRE): emit_loads(slot, slot)
    A(f"s_load_dwordx2 s[6:7], s[0:1], {KA_DBG}\ns_load_dwordx2 s[96:97], s[0:1], {KA_X}\ns_load_dwordx2 s[98:99], s[0:1], {KA_OUT}")
    A(f"s_add_u32 s4, s4, {hex(WS_SEL)}\ns_addc_u32 s5, s5, 0\ns_load_dwordx16 s[{sIdx}:{sIdx+15}], s[4:5], 0")
    A(f"v_lshrrev_b32 {v(X)}, 5, {v(VL)}")
    A(f"v_and_b32 {v(X+1)}, 31, {v(VL)}\ns_lshl_b32 s{sT}, s{sRT}, 6\nv_add_u32 {v(ROW)}, s{sT}, {v(X+1)}\nv_add_u32 {v(ROW+1)}, 32, {v(ROW)}")
    A(f"s_mul_i32 s{sT}, s{sCT}, 192\ns_lshl_b32 s{sT+1}, s{sW}, 4\ns_add_u32 s{sT}, s{sT}, s{sT+1}\nv_lshl_add_u32 {v(VCOL)}, {v(X)}, 3, s{sT}")
    A(f"v_mul_u32_u24 {v(VO)}, 1152, {v(ROW)}\nv_add_u32 {v(VO)}, {v(VO)}, {v(VCOL)}\nv_add_u32 {v(VO+1)}, 36864, {v(VO)}")
    A(f"v_lshlrev_b32 {v(VN)}, 4, {v(X+1)}\nv_lshl_add_u32 {v(VN)}, {v(X)}, 3, {v(VN)}\nv_add_u32 {v(VN2)}, 4096, {v(VN)}")
    A(f"s_mul_i32 s{sT+2}, s{sRT}, 73728\ns_mul_i32 s{sT+3}, s{sCT}, 6144\ns_add_u32 s{sT+2}, s{sT+2}, s{sT+3}\ns_lshl_b32 s{sT+3}, s{sW}, 9\ns_add_u32 s{sT+2}, s{sT+2}, s{sT+3}\ns_add_u32 s{sT+3}, s{sT+2}, 36864")
    A(f"s_mul_i32 s{sT}, s{sW}, 6144\nv_add_u32 {v(VWA)}, s{sT}, {v(VC0)}\nv_add_u32 {v(VWB)}, 49152, {v(VWA)}\nv_add_u32 {v(VRA)}, s{sM}, {v(VC0)}")
    VPW = 240; VPC = 241; VJ = 242
    A(f"v_lshlrev_b32 {v(X+2)}, 7, {v(VL)}\nv_mov_b32 {v(X+3)}, {hex(OOB)}\nv_cmp_gt_u32 vcc, 48, {v(VL)}\ns_mul_i32 s{sPW}, s{sW}, {64*18432}\ns_mul_i32 s{sT}, s{sJ}, 6144\ns_add_u32 s{sPW}, s{sPW}, s{sT}\ns_add_u32 s{sPW}, s{sPW}, {hex(WS_WOF)}\nv_cndmask_b32 {v(VPW)}, {v(X+3)}, {v(X+2)}, vcc")
    A(f"s_mul_i32 s{sT}, s{sCT}, 22\nv_add_u32 {v(X+4)}, s{sT}, {v(VL)}\nv_lshrrev_b32 {v(X+2)}, 6, {v(X+4)}\nv_lshlrev_b32 {v(X+2)}, 18, {v(X+2)}\nv_and_b32 {v(VPC)}, 63, {v(X+4)}\nv_lshl_add_u32 {v(X+2)}, {v(VPC)}, 7, {v(X+2)}")
    A(f"v_cmp_gt_u32 vcc, 128, {v(X+4)}\nv_cmp_gt_u32 s[{sMask}:{sMask+1}], 22, {v(VL)}\ns_nop 1\ns_and_b64 vcc, vcc, s[{sMask}:{sMask+1}]\ns_sub_u32 s{sPC}, s{sC}, {1024*NPRE}\nv_cndmask_b32 {v(VPC)}, {v(X+3)}, {v(X+2)}, vcc")
    touch = [f"buffer_load_dword {v(VJ)}, {v(VPW)}, {WS}, s{sPW} offen", f"buffer_load_dword {v(VJ)}, {v(VPC)}, {WS}, s{sPC} offen"]
    tadv = [f"s_add_u32 s{sPW}, s{sPW}, {8*18432}", f"s_add_u32 s{sPC}, s{sPC}, 8192"]
    if 'touch' not in OPT3: A(f"v_mov_b32 {v(VPW)}, {hex(OOB)}\nv_mov_b32 {v(VPC)}, {hex(OOB)}")
    TL = int(os.environ.get('K3TL', '2'))
    for b_ in range(TL):
        for x in touch + tadv: A(x)
    for slot in range(NPRE, NSL):
        emit_loads(slot, slot)
        for i in range(96 * (slot - NPRE) // (NSL - NPRE), 96 * (slot + 1 - NPRE) // (NSL - NPRE)): A(f"v_mov_b32 {v(ACC+i)}, 0")
    A("s_waitcnt lgkmcnt(0)")
    srd(A, S_X, 96, 2048 * 576 * 2); srd(A, S_OUT, 98, 2048 * 576 * 2); srd(A, S_DBG, 6, 256)
    ST.mark()
    ST.mark()
    A(f"s_mov_b32 s{sCnt}, 0")
    ST.at(4)
    A(".p2align 6")
    A.label("L_k3_loop")
    A(f"s_cmp_lt_u32 s{sCnt}, {64//NSL-1}\ns_cselect_b32 s{sC}, s{sC}, {hex(OOB)}\ns_cselect_b32 s{sWo}, s{sWo}, {hex(OOB)}")
    for slot in range(NSL):
        b = FR + 20 * slot; ld = loads(slot)
        A(f"s_waitcnt vmcnt({5*(NSL-1) + (2 if slot > 0 else 0)})")
        if slot == 0:
            A(f"s_cmp_lt_u32 s{sCnt}, {8-TL}\ns_cselect_b32 s{sPC}, s{sPC}, {hex(OOB)}\ns_cselect_b32 s{sPW}, s{sPW}, {hex(OOB)}")
            for x in touch + tadv: A(x)
        order = [(0, 0), (0, 1), (1, 0), (1, 1), (2, 0), (2, 1)]
        after = {1: [ld[1]], 3: [ld[3]], 4: [ld[0]], 5: [ld[4], ld[2], ld[5], ld[6]]}
        for g, (mb, qb) in enumerate(order):
            acc = v(ACC + (mb * 2 + qb) * 16, 16)
            A(f"{MFMA} {acc}, {a(b+4*mb,4)}, {a(b+12+4*qb,4)}, {acc}")
            for x in after.get(g, []): A(x)
    A(f"s_add_u32 s{sCnt}, s{sCnt}, 1\ns_cmp_lt_u32 s{sCnt}, {64//NSL-1}\ns_cbranch_scc1 L_k3_loop\ns_cmp_eq_u32 s{sCnt}, {64//NSL}\ns_cbranch_scc1 L_k3_loopend")
    for mb in range(3):
        for qb in range(2):
            tau = mb * 2 + qb
            A(f"buffer_load_dwordx2 {v(RX+2*tau,2)}, {v(VO+qb)}, s[{S_X}:{S_X+3}], 0 offen offset:{64*mb}")
            A(f"buffer_load_dwordx2 {v(RN+2*tau,2)}, {v(VN if mb < 2 else VN2)}, {WS}, s{sT+2+qb} offen offset:{2048*(mb%2)}")
    for qb in range(2):
        A(f"v_mov_b32 {v(SEL+qb)}, -1\nv_mov_b32 {v(SG+qb)}, 0")
        for t_ in range(8):
            A(f"v_cmp_eq_u32 vcc, s{sIdx+t_}, {v(ROW+qb)}\nv_mov_b32 {v(X+2)}, {2304*t_}\nv_mov_b32 {v(X+3)}, s{sSig+t_}")
            A(f"v_cndmask_b32 {v(SEL+qb)}, {v(SEL+qb)}, {v(X+2)}, vcc\nv_cndmask_b32 {v(SG+qb)}, {v(SG+qb)}, {v(X+3)}, vcc")
    A("s_branch L_k3_loop")
    A.label("L_k3_loopend")
    ST.mark()
    for j in range(4):
        for tau in range(6):
            A(f"ds_write_b128 {v(VWA if j < 2 else VWB)}, {v(ACC+16*tau+4*j,4)} offset:{(j%2)*24576 + 1024*tau}")
    YV = 96
    for i in range(24): A(f"v_mov_b32 {v(YV+i)}, 0")
    A(f"v_max_i32 {v(X+2)}, {v(SEL)}, {v(SEL+1)}\nv_cmp_le_i32 vcc, 0, {v(X+2)}\ns_cbranch_vccz L_k3_nosel")
    A(f"v_mov_b32 {v(X+3)}, 0\ns_mov_b32 s{sT}, 0")
    A.label("L_k3_poll")
    A(f"buffer_load_dword {v(X+2)}, {v(X+3)}, s[{S_DBG}:{S_DBG+3}], 0 offen sc1\ns_waitcnt vmcnt(0)\nv_readfirstlane_b32 s{sT+1}, {v(X+2)}")
    A(f"s_add_u32 s{sT}, s{sT}, 1\ns_cmp_ge_u32 s{sT+1}, {NFFN}\ns_cbranch_scc1 L_k3_polled")
    A(f"s_sleep 8\ns_cmp_lt_u32 s{sT}, 0x100000\ns_cbranch_scc1 L_k3_poll")
    A.label("L_k3_polled")
    A(f"s_mov_b32 s{sT+2}, {hex(WS_Y)}")
    for qb in range(2):
        lab = A.newlabel("k3_sel")
        A(f"v_lshl_add_u32 {v(X+2)}, {v(VCOL)}, 1, {v(SEL+qb)}")
        A(f"v_cmp_le_i32 vcc, 0, {v(SEL+qb)}\ns_and_saveexec_b64 s[{sMask}:{sMask+1}], vcc\ns_cbranch_execz {lab}")
        for mb in range(3):
            A(f"buffer_load_dwordx4 {v(YV+(mb*2+qb)*4,4)}, {v(X+2)}, {WS}, s{sT+2} offen offset:{128*mb} sc1")
        A.label(lab)
        A(f"s_mov_b64 exec, s[{sMask}:{sMask+1}]")
    A.label("L_k3_nosel")
    A(f"s_waitcnt vmcnt({min(63, 5*NSL)})")
    RS_ = 140
    for tau in range(6):
        for hf in range(2):
            d = RS_ + tau * 4 + 2 * hf
            rx = RX + 2 * tau + hf; rn = RN + 2 * tau + hf
            A(f"v_lshlrev_b32 {v(d)}, 16, {v(rx)}\nv_lshlrev_b32 {v(X+4)}, 16, {v(rn)}\nv_and_b32 {v(d+1)}, 0xffff0000, {v(rx)}\nv_and_b32 {v(X+3)}, 0xffff0000, {v(rn)}")
            A(f"v_add_f32 {v(d)}, {v(d)}, {v(X+4)}\nv_add_f32 {v(d+1)}, {v(d+1)}, {v(X+3)}")
    A("s_waitcnt lgkmcnt(0)\ns_barrier")
    R = 0
    for tau in range(6):
        for s_ in range(4):
            A(f"ds_read_b128 {v(R+(tau*4+s_)*4,4)}, {v(VRA)} offset:{6144*s_ + 1024*tau}")
    A("s_waitcnt vmcnt(0)")
    for i in range(24): A(f"v_fmac_f32 {v(RS_+i)}, {v(YV+i)}, {v(SG+((i//4)&1))}")
    for tau in range(6):
        qb = tau & 1; mb = tau // 2
        A(f"s_waitcnt lgkmcnt({min(15, 4*(5-tau))})")
        b = R + tau * 16
        for i in range(4): A(f"v_add_f32 {v(b+i)}, {v(b+i)}, {v(b+4+i)}\nv_add_f32 {v(b+8+i)}, {v(b+8+i)}, {v(b+12+i)}")
        for i in range(4): A(f"v_add_f32 {v(b+i)}, {v(b+i)}, {v(b+8+i)}")
        for i in range(4): A(f"v_add_f32 {v(b+i)}, {v(b+i)}, {v(RS_+tau*4+i)}")
        A(f"v_cvt_pk_bf16_f32 {v(b+4)}, {v(b)}, {v(b+1)}\nv_cvt_pk_bf16_f32 {v(b+5)}, {v(b+2)}, {v(b+3)}")
        A(f"buffer_store_dwordx2 {v(b+4,2)}, {v(VO+qb)}, s[{S_OUT}:{S_OUT+3}], 0 offen offset:{64*mb}")
    def fin():
        if STAMP():
            ST.at(6)
            A("s_waitcnt vmcnt(0)")
            ST.at(7)
            A("s_waitcnt lgkmcnt(0)\ns_mov_b32 s76, s82")
            ST.n = 9
            ST.dump(S_WS, sW, X, sT, 0x8200000, 4)
        A("s_endpgm")
    fin()
    A.label("L_k3_ffn")
    A(f"s_load_dwordx4 s[92:95], s[0:1], {KA_WG}\ns_load_dwordx2 s[96:97], s[0:1], {KA_WD}\ns_load_dwordx2 s[6:7], s[0:1], {KA_DBG}")
    sG = sRT
    A(f"s_mul_i32 s{sG}, s{sXc}, 6\ns_add_u32 s{sG}, s{sG}, s{sJ}")
    VDG = 200; VST = 203; VRDS = 204; VXS = 205; VD16 = 206; VWD = 207; VCP = 209
    STG = 110592
    for q in range(3):
        A(f"v_mul_u32_u24 {v(VDG+q)}, 9216, {v(VR+q)}\nv_add_u32 {v(VDG+q)}, {v(VDG+q)}, {v(VCH+q)}")
    A(f"s_mul_i32 s{sT}, s{sW}, {144*9216}\ns_mul_i32 s{sT+1}, s{sG}, 192\ns_add_u32 s{sT}, s{sT}, s{sT+1}")
    A("s_waitcnt lgkmcnt(0)")
    srd(A, S_WS, 4, WS_BYTES)
    A(f"s_add_u32 s4, s4, {hex(WS_SEL)}\ns_addc_u32 s5, s5, 0\ns_load_dwordx8 s[{sIdx}:{sIdx+7}], s[4:5], 0")
    srd(A, S_B, 92, 576 * 4608 * 2); srd(A, S_B2, 94, 576 * 4608 * 2); srd(A, S_B3, 96, 4608 * 576 * 2); srd(A, S_DBG, 6, 256)
    vm = VM(A)
    def wload(ks):
        for mat in range(2):
            sb = S_B if mat == 0 else S_B2
            for q in range(3):
                vm.issue(f"buffer_load_dwordx4 {a(((ks*2+mat)*3+q)*4,4)}, {v(VDG+q)}, s[{sb}:{sb+3}], s{sT} offen", ks * 2 + mat)
        A(f"s_add_u32 s{sT}, s{sT}, {16*9216}")
    wload(0); wload(1)
    A(f"v_lshlrev_b32 {v(VD16)}, 4, {v(VL)}")
    A(f"s_mul_i32 s{sM}, s{sW}, 12288\ns_add_u32 s{sM}, s{sM}, {STG}\nv_add_u32 {v(VST)}, s{sM}, {v(VD16)}")
    A(f"v_bfe_u32 {v(X+1)}, {v(VL)}, 4, 1\nv_lshlrev_b32 {v(X+1)}, 5, {v(X+1)}\nv_and_b32 {v(X+2)}, 3, {v(VL)}\nv_lshl_add_u32 {v(X+1)}, {v(X+2)}, 3, {v(X+1)}")
    A(f"v_lshrrev_b32 {v(X)}, 5, {v(VL)}\nv_bfe_u32 {v(X+2)}, {v(VL)}, 2, 2")
    A(f"v_lshl_add_u32 {v(X+3)}, {v(X)}, 3, {v(X+2)}\nv_mul_u32_u24 {v(X+3)}, 192, {v(X+3)}\nv_add_u32 {v(X+3)}, {v(X+3)}, {v(X+1)}\nv_add_u32 {v(VRDS)}, s{sM}, {v(X+3)}")
    A(f"v_lshl_add_u32 {v(X+3)}, {v(X)}, 2, {v(X+2)}\nv_mul_u32_u24 {v(X+3)}, 1152, {v(X+3)}\nv_add_u32 {v(X+3)}, {v(X+3)}, {v(X+1)}")
    A(f"s_lshl_b32 s{sT+1}, s{sW}, 6\nv_add_u32 {v(VWD)}, s{sT+1}, {v(X+3)}\nv_add_u32 {v(VWD+1)}, {48*1152}, {v(VWD)}")
    A(f"v_mov_b32 {v(VXS)}, {hex(OOB)}\ns_waitcnt lgkmcnt(0)")
    for t_ in range(8):
        A(f"s_lshr_b32 s{sT+2}, s{sIdx+t_}, 5\ns_mul_i32 s{sT+2}, s{sT+2}, 36864\ns_and_b32 s{sT+3}, s{sIdx+t_}, 31\ns_lshl_b32 s{sT+3}, s{sT+3}, 4\ns_add_u32 s{sT+2}, s{sT+2}, s{sT+3}")
        A(f"v_writelane_b32 {v(VXS)}, s{sT+2}, {t_}\nv_writelane_b32 {v(VXS)}, s{sT+2}, {32+t_}")
    A(f"v_lshl_add_u32 {v(VXS)}, {v(X)}, 9, {v(VXS)}\ns_mul_i32 s{sT+2}, s{sW}, 9216")
    XS = 96
    for ks in range(9):
        vm.issue(f"buffer_load_dwordx4 {v(XS+4*ks,4)}, {v(VXS)}, {WS}, s{sT+2} offen offset:{1024*(ks%4)}", 'X')
        if ks % 4 == 3: A(f"s_add_u32 s{sT+2}, s{sT+2}, 4096")
    for ks in range(2, 5): wload(ks)
    sD = sT + 1; sL = sT + 3
    A(f"s_mul_i32 s{sL}, s{sW}, 27648\ns_mul_i32 s{sD}, s{sG}, 110592\ns_add_u32 s{sD}, s{sD}, s{sL}")
    ndma = [0]
    def wd_dma(n):
        for _ in range(n):
            i = ndma[0]
            if i >= 27: return
            if i % 4 == 0:
                A(f"s_add_u32 m0, s{sL}, {1024*i}\ns_add_u32 s{sT+2}, s{sD}, {1024*i}")
            vm.issue(f"buffer_load_dwordx4 {v(VD16)}, s[{S_B3}:{S_B3+3}], s{sT+2} offen offset:{1024*(i%4)} lds", 'D')
            ndma[0] += 1
    ST.at(1)
    GW = 132
    def stage(it):
        slot = it % 4; w = GW + 12 * (it & 1)
        vm.wait(it)
        for q in range(3): A(f"ds_write_b128 {v(VST)}, {a((it*3+q)*4,4)} offset:{3072*slot + 1024*q}")
        for fb in range(3):
            for e in range(2): A(f"ds_read_b64_tr_b16 {v(w+4*fb+2*e,2)}, {v(VRDS)} offset:{3072*slot + 768*e + 64*fb}")
    vm.wait('X')
    stage(0)
    for it in range(18):
        ks, mat = it // 2, it % 2
        if mat == 0 and ks + 5 < 9: wload(ks + 5)
        elif ks + 5 >= 9: wd_dma(3)
        if it + 1 < 18: stage(it + 1); A("s_waitcnt lgkmcnt(9)")
        else: A("s_waitcnt lgkmcnt(0)")
        w = GW + 12 * (it & 1)
        for fb in range(3):
            acc = v((mat * 3 + fb) * 16, 16)
            A(f"{MFMA} {acc}, {v(w+4*fb,4)}, {v(XS+4*ks,4)}, {'0' if ks == 0 else acc}")
    wd_dma(27)
    ST.at(2)
    A(f"v_and_b32 {v(X)}, 31, {v(VL)}\nv_lshrrev_b32 {v(X+1)}, 5, {v(VL)}\nv_lshl_add_u32 {v(X+2)}, {v(X+1)}, 3, {v(X)}\nv_lshlrev_b32 {v(X+2)}, 4, {v(X+2)}")
    A(f"v_add_u32 {v(VCP)}, s{sM}, {v(X+2)}\nv_cmp_gt_u32 s[{sMask}:{sMask+1}], 8, {v(X)}")
    A(f"s_lshl_b32 s{sT}, s{sW}, 8\ns_add_u32 s{sT}, s{sT}, {STG}\nv_add_u32 {v(VCP+1)}, s{sT}, {v(X+2)}")
    A(f"s_mov_b64 exec, s[{sMask}:{sMask+1}]")
    for qd in range(24): A(f"ds_write_b128 {v(VCP)}, {v(4*qd,4)} offset:{256*qd}")
    A("s_waitcnt lgkmcnt(0)\ns_barrier")
    for s_ in range(4):
        for blk in range(6): A(f"ds_read_b128 {v((s_*6+blk)*4,4)}, {v(VCP+1)} offset:{12288*s_ + 1024*blk}")
    A("s_waitcnt lgkmcnt(0)")
    for i in range(24):
        A(f"v_add_f32 {v(i)}, {v(i)}, {v(i+24)}\nv_add_f32 {v(i+48)}, {v(i+48)}, {v(i+72)}")
    for i in range(24): A(f"v_add_f32 {v(i)}, {v(i)}, {v(i+48)}")
    def rnd(r):
        A(f"v_cvt_pk_bf16_f32 {v(48+r)}, {v(r)}, {v(r+1)}\nv_lshlrev_b32 {v(r)}, 16, {v(48+r)}\nv_and_b32 {v(r+1)}, 0xffff0000, {v(48+r)}")
    for i in range(0, 24, 2): rnd(i)
    for i in range(12): A(f"v_mul_f32 {v(24+i)}, {hex(f32bits(-math.log2(math.e)))}, {v(i)}")
    for i in range(12): A(f"v_exp_f32 {v(24+i)}, {v(24+i)}")
    for i in range(12): A(f"v_add_f32 {v(24+i)}, 1.0, {v(24+i)}")
    for i in range(12): A(f"v_rcp_f32 {v(24+i)}, {v(24+i)}")
    for i in range(12): A(f"v_mul_f32 {v(i)}, {v(i)}, {v(24+i)}")
    for i in range(0, 12, 2): rnd(i)
    for i in range(12): A(f"v_mul_f32 {v(i)}, {v(i)}, {v(12+i)}")
    for i in range(6): A(f"v_cvt_pk_bf16_f32 {v(24+i)}, {v(2*i)}, {v(2*i+1)}")
    HB = STG + 6144
    A(f"s_lshr_b32 s{sT}, s{sW}, 1\ns_lshl_b32 s{sT}, s{sT}, 10\ns_and_b32 s{sT+1}, s{sW}, 1\ns_lshl_b32 s{sT+1}, s{sT+1}, 3\ns_add_u32 s{sT}, s{sT}, s{sT+1}\ns_add_u32 s{sT}, s{sT}, {HB}")
    A(f"v_add_u32 {v(X)}, s{sT}, {v(VD16)}")
    for fb in range(3): A(f"ds_write_b64 {v(X)}, {v(24+2*fb,2)} offset:{2048*fb}")
    A("s_mov_b64 exec, -1")
    HF = 96
    YB = STG + 12288
    A(f"v_add_u32 {v(X)}, {HB}, {v(VD16)}")
    A(f"v_and_b32 {v(X+1)}, 31, {v(VL)}\nv_mul_u32_u24 {v(X+1)}, 2304, {v(X+1)}\nv_lshrrev_b32 {v(X+2)}, 5, {v(VL)}\nv_lshl_add_u32 {v(X+1)}, {v(X+2)}, 4, {v(X+1)}")
    A(f"s_lshl_b32 s{sT}, s{sW}, 7\ns_add_u32 s{sT}, s{sT}, {YB}\nv_add_u32 {v(VCP)}, s{sT}, {v(X+1)}")
    A("s_waitcnt vmcnt(0) lgkmcnt(0)\ns_barrier")
    ST.at(3)
    for f in range(6): A(f"ds_read_b128 {v(HF+4*f,4)}, {v(X)} offset:{1024*f}")
    def dread(i):
        w = GW + 24 * (i & 1)
        for f in range(6):
            for e in range(2):
                row = 16 * f + 8 * e
                base, ro = (VWD, row) if row < 48 else (VWD + 1, row - 48)
                A(f"ds_read_b64_tr_b16 {v(w+4*f+2*e,2)}, {v(base)} offset:{ro*1152 + 256*i}")
    dread(0)
    for i in range(5):
        if i < 4: dread(i + 1); A("s_waitcnt lgkmcnt(12)")
        else: A("s_waitcnt lgkmcnt(0)")
        w = GW + 24 * (i & 1)
        acc = v(16 * i, 16)
        for f in range(6): A(f"{MFMA} {acc}, {v(w+4*f,4)}, {v(HF+4*f,4)}, {'0' if f == 0 else acc}")
    A(f"s_mov_b64 exec, s[{sMask}:{sMask+1}]")
    for i in range(5):
        if i == 4: A(f"s_cmp_ge_u32 s{sW}, 2\ns_cbranch_scc1 L_k3_ffn_y\ns_nop 7")
        for j in range(4): A(f"ds_write_b128 {v(VCP)}, {v(16*i+4*j,4)} offset:{512*i + 32*j}")
    A.label("L_k3_ffn_y")
    A("s_mov_b64 exec, -1")
    A(f"v_lshlrev_b32 {v(X)}, 2, {v(VL)}\ns_mul_i32 s{sT}, s{sW}, 4608\nv_add_u32 {v(X)}, s{sT}, {v(X)}\nv_add_u32 {v(X+1)}, {YB}, {v(X)}")
    A("s_waitcnt lgkmcnt(0)\ns_barrier")
    ST.at(4)
    for i in range(18): A(f"ds_read_b32 {v(i)}, {v(X+1)} offset:{256*i}")
    A(f"s_mov_b32 s{sT}, {hex(WS_Y)}\ns_add_u32 s{sT+1}, s{sT}, 4096\ns_waitcnt lgkmcnt(0)")
    for i in range(18):
        A(f"buffer_atomic_add_f32 {v(i)}, {v(X)}, {WS}, s{sT + (i//16)} offen offset:{256*(i%16)} sc0")
    A("s_waitcnt vmcnt(0)\ns_barrier")
    A(f"s_cmp_lg_u32 s{sW}, 0\ns_cbranch_scc1 L_k3_ffn_end")
    A(f"v_mov_b32 {v(0)}, 1\nv_mov_b32 {v(1)}, 0\ns_mov_b64 exec, 1")
    A(f"buffer_atomic_add {v(0)}, {v(1)}, s[{S_DBG}:{S_DBG+3}], 0 offen sc1")
    A("s_mov_b64 exec, -1")
    A.label("L_k3_ffn_end")
    fin()
    A.label("L_k3_done")
    A("s_endpgm")
    A.label("L_k3_codeend")
    return name, A.text(), kernel_desc(name, 256 + max(216, 20*NSL), 102, accum=256), f"grid=({192+NFFN},1,1) block=(256,1,1) lds=163840"
```

```python
import sys
from common import *
import common
from k1 import gen_k1
from k2 import gen_k2
from k3 import gen_k3

def assemble(kernels, path):
    hdr = ""; body = ""; desc = ""
    for name, text, d, launch in kernels:
        hdr += f"; @launch kernel={name} {launch}\n"
        text, nfix = hazard.fix_text(text)
        print(name, 'auto nops:', nfix)
        body += text; desc += d
    out = hdr + '.amdgcn_target "amdgcn-amd-amdhsa--gfx950"\n.text\n' + body + '.section .rodata,"a"\n' + desc
    open(path, 'w').write(out)
    return out

if __name__ == '__main__':
    if 'stamp' in sys.argv: common._ST[0] = True
    if 'lite' in sys.argv: common._LITE[0] = True
    ks = [gen_k1(('attn_kernel', 'L_k2_codeend')), gen_k2(('oproj_kernel', 'L_k3_codeend')), gen_k3()]
    out = assemble(ks, sys.argv[1] if len(sys.argv) > 1 else 'k.s')
    print("hazards:", hazard.check_text(out))
```
